```python
import torch

def _softmax(x, axis=-1):
    return torch.softmax(x, dim=axis)

def _gelu(x):
    return torch.nn.functional.gelu(x, approximate='tanh')

def _silu(x):
    return torch.nn.functional.silu(x)

def _sigmoid(x):
    return torch.sigmoid(x)

def _layernorm(x, axis=-1, eps=1e-05):
    m = x.mean(dim=axis, keepdim=True)
    v = x.var(dim=axis, keepdim=True, unbiased=False)
    return (x - m) / torch.sqrt(v + eps)

def _scatter_add(tgt, idx, src, axis=0):
    return tgt.clone().index_add_(axis, idx, src)

def _segment_sum(src, seg, n):
    out = torch.zeros((n,) + src.shape[1:], dtype=src.dtype)
    return out.index_add_(0, seg, src)

def _pad(x, pw):
    flat = tuple((v for pair in reversed(pw) for v in pair))
    return torch.nn.functional.pad(x, flat)
kernel_name = 'adaLN_cond__sliding_block__mixer_channel_mlp__prompt'

def setup_inputs():

    _w = lambda a: (lambda t: t.to(torch.bfloat16) if t.is_floating_point() else t)(torch.as_tensor(a))

    def _A_setup():
        B, S, D = (1, 2048, 512)
        return {'x': _w((lambda *s: torch.randn(*s, dtype=torch.bfloat16) * 0.05)(B, S, D)), 'wqkv': _w((lambda *s: torch.randn(*s, dtype=torch.bfloat16) * 0.05)(D, 3 * D)), 'wo': _w((lambda *s: torch.randn(*s, dtype=torch.bfloat16) * 0.05)(D, D))}
    _A_in = _A_setup()

    def _B_setup():
        B, S, D, F = (1, 2048, 512, 1792)
        return {'x': _w((lambda *s: torch.randn(*s, dtype=torch.bfloat16) * 0.05)(B, S, D)), 'w1': _w((lambda *s: torch.randn(*s, dtype=torch.bfloat16) * 3.2)(D, F) * D ** (-0.5)), 'b1': _w((lambda *s: torch.randn(*s, dtype=torch.bfloat16) * 1.6)(F)), 'w2': _w((lambda *s: torch.randn(*s, dtype=torch.bfloat16) * 0.2)(F, D) * F ** (-0.5)), 'b2': _w((lambda *s: torch.randn(*s, dtype=torch.bfloat16) * 0.4)(D))}
    _B_in = _B_setup()
    return {'A_x': _A_in['x'], 'A_wqkv': _A_in['wqkv'], 'A_wo': _A_in['wo'], 'B_x': _B_in['x'], 'B_w1': _B_in['w1'], 'B_b1': _B_in['b1'], 'B_w2': _B_in['w2'], 'B_b2': _B_in['b2'], 'c': _w((lambda *s: torch.randn(*s, dtype=torch.bfloat16) * 0.1)(1, 512) * 8.0), 'w_mod': _w((lambda *s: torch.randn(*s, dtype=torch.bfloat16) * 0.1)(512, 6 * 512) * 512 ** (-0.5) * 8.0)}

def reference(A_x, A_wqkv, A_wo, B_x, B_w1, B_b1, B_w2, B_b2, c, w_mod):

    def _A_ref(x, wqkv, wo):
        B, S, D = x.shape
        H = 32
        Dh = D // H
        W = 256
        qkv = (lambda x, *d: x.permute(*d))((x @ wqkv).reshape(B, S, 3, H, Dh), 2, 0, 3, 1, 4)
        q, k, v = (qkv[0], qkv[1], qkv[2])
        scores = torch.einsum('bhqd,bhkd->bhqk', q, k) * Dh ** (-0.5)
        idx = torch.arange(S)
        mask = (idx[:, None] - idx[None, :] >= 0) & (idx[:, None] - idx[None, :] < W)
        scores = torch.where(mask[None, None], scores, -1000000000.0)
        p = _softmax(scores, axis=-1)
        o = torch.einsum('bhqk,bhkd->bhqd', p, v)
        return (lambda x, *d: x.permute(*d))(o, 0, 2, 1, 3).reshape(B, S, D) @ wo

    def _B_ref(x, w1, b1, w2, b2):
        y = _layernorm(x, axis=-1)
        h = _gelu(torch.einsum('bsd,df->bsf', y, w1) + b1)
        return torch.einsum('bsf,fd->bsd', h, w2) + b2
    x = A_x
    mod = (_silu(c) @ w_mod).reshape(c.shape[0], 6, 1, -1)
    sa, ca, ga, sb, cb, gb = (mod[:, 0].clone(), mod[:, 1].clone(), mod[:, 2].clone(), mod[:, 3].clone(), mod[:, 4].clone(), mod[:, 5].clone())
    h = _layernorm(x, axis=-1) * (1 + ca) + sa
    x = x + ga * _A_ref(h, A_wqkv, A_wo)
    h = _layernorm(x, axis=-1) * (1 + cb) + sb
    x = x + gb * _B_ref(h, B_w1, B_b1, B_w2, B_b2)
    return x
```

```python
import re

TRANS = ("v_exp_f32", "v_log_f32", "v_rcp_f32", "v_rsq_f32", "v_sqrt_f32", "v_sin_f32", "v_cos_f32")

def regs_of(op):
    op = op.strip()
    op = op.lstrip("-")
    if op.startswith("abs(") or op.startswith("|"):
        op = op.replace("abs(", "").replace(")", "").replace("|", "")
    m = re.fullmatch(r"([vsa])(\d+)", op)
    if m: return {f"{m.group(1)}{m.group(2)}"}
    m = re.fullmatch(r"([vsa])\[(\d+):(\d+)\]", op)
    if m: return {f"{m.group(1)}{i}" for i in range(int(m.group(2)), int(m.group(3)) + 1)}
    if op in ("vcc", "vcc_lo", "vcc_hi"): return {"vcc"}
    if op in ("exec", "exec_lo", "exec_hi"): return {"exec"}
    if op == "m0": return {"m0"}
    return set()

class Ins:
    def __init__(self, text):
        self.text = text
        t = text.split(";")[0].strip()
        self.label = None
        self.kind = "other"
        self.w = set(); self.r = set()
        self.srcA = set(); self.srcB = set(); self.srcC = set()
        self.mn = ""
        if t.endswith(":"):
            self.label = t[:-1]; self.kind = "label"; return
        if t.startswith(".") or not t:
            self.kind = "dir"; return
        parts = t.split(None, 1)
        mn = parts[0]; self.mn = mn
        rest = parts[1] if len(parts) > 1 else ""
        ops = []; depth = 0; cur = ""
        for ch in rest:
            if ch in "[(": depth += 1
            if ch in "])": depth -= 1
            if ch == "," and depth == 0: ops.append(cur.strip()); cur = ""
            else: cur += ch
        if cur.strip(): ops.append(cur.strip())
        mods = ""
        if ops:
            last = ops[-1].split(None, 1)
            ops[-1] = last[0]
            mods = last[1] if len(last) > 1 else ""
        self.ops = ops; self.mods = mods
        R = [regs_of(o) for o in ops]
        if mn.startswith("v_mfma"):
            self.kind = "mfma"; self.w = R[0]; self.srcA = R[1]; self.srcB = R[2]; self.srcC = R[3]
            self.r = R[1] | R[2] | R[3]
            self.passes = 8 if "32x32" in mn else 4
        elif mn.startswith("v_"):
            self.kind = "valu"
            base = mn.replace("_e32", "").replace("_e64", "").replace("_dpp", "").replace("_sdwa", "")
            self.base = base
            self.dpp = ("quad_perm" in mods or "row_" in mods or mn.endswith("_dpp"))
            if base.startswith("v_permlane") and "swap" in base:
                self.w = R[0] | R[1]; self.r = R[0] | R[1]
            elif base in ("v_add_co_u32", "v_sub_co_u32", "v_addc_co_u32", "v_subb_co_u32", "v_subrev_co_u32"):
                self.w = R[0] | R[1]; self.r = set().union(*R[2:])
            elif base == "v_nop":
                pass
            else:
                self.w = R[0]; self.r = set().union(*R[1:]) if len(R) > 1 else set()
                if base in ("v_fmac_f32", "v_dot2c_f32_bf16", "v_writelane_b32") or self.dpp: self.r |= R[0]
                if base.startswith("v_cmpx"): self.w |= {"exec"}
        elif mn.startswith("ds_"):
            self.kind = "ds"
            if mn.startswith("ds_read") or "permute" in mn or "swizzle" in mn:
                self.w = R[0]; self.r = set().union(*R[1:])
            else:
                self.r = set().union(*R)
        elif mn.startswith("buffer_") or mn.startswith("global_"):
            self.kind = "vmem"
            self.lds = (" lds" in " " + mods) or "_lds_" in mn
            if mn in ("buffer_wbl2", "buffer_inv"): pass
            elif "_load" in mn and not self.lds:
                self.w = R[0]; self.r = set().union(*R[1:])
            elif "_load" in mn:
                self.r = set().union(*R) | {"m0"}
            else:
                self.r = set().union(*R)
                self.sdata = R[0] if mn.startswith("buffer_") else R[1]
                self.wide = mn.endswith("x3") or mn.endswith("x4")
        elif mn.startswith("s_"):
            self.kind = "salu"
            if mn.startswith("s_cbranch") or mn == "s_branch": self.kind = "branch"; self.target = ops[0]
            elif mn in ("s_waitcnt", "s_barrier", "s_nop", "s_endpgm", "s_setprio", "s_sleep"): pass
            elif mn.startswith("s_cmp"): self.r = set().union(*R)
            else:
                self.w = R[0] if R else set(); self.r = set().union(*R[1:]) if len(R) > 1 else set()
                if "saveexec" in mn: self.w |= {"exec"}
    def states(self):
        if self.kind in ("label", "dir"): return 0
        if self.mn == "s_nop": return int(self.ops[0], 0) + 1
        return 1

def vregs(s): return {x for x in s if x[0] in "va" and x != "vcc"}
def sregs(s): return {x for x in s if x[0] == "s" or x == "vcc"}

def need(prod, cons):
    n = 0
    pk, ck = prod.kind, cons.kind
    if pk == "valu":
        pw = vregs(prod.w); ps = sregs(prod.w)
        if ck == "mfma" and pw & cons.r: n = max(n, 2)
        if ck == "mfma" and "exec" in prod.w: n = max(n, 4)
        if ck == "valu":
            if cons.dpp and pw & cons.r: n = max(n, 2)
            if cons.dpp and "exec" in prod.w: n = max(n, 5)
            if cons.base.startswith("v_permlane") and pw & cons.r: n = max(n, 2)
            if cons.base in ("v_readfirstlane_b32", "v_readlane_b32") and pw & cons.r: n = max(n, 1)
            if prod.base in TRANS and pw & cons.r and cons.base not in TRANS: n = max(n, 1)
            if prod.base in TRANS and pw & cons.r: n = max(n, 1)
            if ps & cons.r: n = max(n, 4 if cons.base in ("v_readlane_b32", "v_writelane_b32") else 2)
            if "exec" in prod.w and cons.base in ("v_readfirstlane_b32", "v_readlane_b32", "v_writelane_b32"): n = max(n, 4)
            if ("sdwa" in prod.mn or "op_sel:" in prod.mods and not prod.base.startswith("v_pk")) and pw & (cons.r | cons.w): n = max(n, 1)
        if ck in ("vmem", "ds") and prod.base in TRANS and pw & cons.r: n = max(n, 1)
        if ck == "vmem" and ps & cons.r: n = max(n, 5)
        if ck in ("salu", "branch") and ps & cons.r: n = max(n, 1)
        if ck == "branch" and "vcc" in prod.w and "vcc" in cons.mn: n = max(n, 1)
    elif pk == "mfma":
        big = prod.passes == 8
        if ck == "mfma":
            if prod.w & (cons.srcA | cons.srcB): n = max(n, 12 if big else 8)
            if prod.w & cons.srcC:
                if prod.w == cons.srcC and prod.passes == cons.passes: pass
                else: n = max(n, 10 if big else 6)
            if prod.w & cons.w and not (prod.w == cons.srcC):
                n = max(n, 12 if big else 8)
        elif ck in ("valu", "vmem", "ds"):
            if prod.w & (cons.r | cons.w): n = max(n, 12 if big else 8)
            if ck == "valu" and prod.srcC & cons.w: n = max(n, 7 if big else 3)
            if ck in ("vmem", "ds") and prod.srcC & cons.w: n = max(n, 7 if big else 3)
    elif pk == "vmem":
        if getattr(prod, "wide", False) and prod.sdata & cons.w: n = max(n, 2)
    elif pk == "ds":
        if prod.mn.startswith("ds_write") and prod.mn.endswith("128") and (prod.r & cons.w) and ck == "valu": n = max(n, 1)
    elif pk == "salu":
        if "m0" in prod.w and "m0" in cons.r and ck == "vmem": n = max(n, 1)
    return n

class Asm:
    def __init__(self):
        self.lines = []
        self.vm = []
        self.nlab = 0
    def I(self, text, tag=None):
        for t in text.split("\n"):
            t = t.strip()
            if not t: continue
            self.lines.append(t)
            mn = t.split()[0]
            if (mn.startswith("buffer_") or mn.startswith("global_")):
                self.vm.append(tag)
    def C(self, text): self.lines.append("; " + text)
    def label(self, name): self.lines.append(name + ":")
    def newlabel(self, p="L"):
        self.nlab += 1; return f"{p}_{self.nlab}"
    def vmwait(self, tag, extra=""):
        idx = max(i for i, t in enumerate(self.vm) if t == tag)
        n = len(self.vm) - 1 - idx
        assert n <= 63, n
        self.vm = self.vm[idx + 1:]
        self.lines.append(f"s_waitcnt vmcnt({n}) {extra}".strip())
    def vmwait0(self, extra=""):
        self.vm = []
        self.lines.append(f"s_waitcnt vmcnt(0) {extra}".strip())
    def finalize(self):
        out = []
        hist = []
        snaps = {}
        W = 14
        nins = 0
        for t in self.lines:
            if t.startswith(";"):
                out.append(t); continue
            ins = Ins(t)
            if ins.kind == "dir":
                out.append(t); continue
            if ins.kind == "label":
                for h in snaps.get(ins.label, []):
                    hist = hist + [list(x) for x in h]
                out.append(t); continue
            req = 0
            for p, d in hist:
                n = need(p, ins)
                if n - d > req: req = n - d
            while req > 0:
                k = min(req, 16)
                out.append(f"s_nop {k-1}"); nins += 1
                for h in hist: h[1] += k
                req -= k
            out.append(t)
            st = ins.states()
            for h in hist: h[1] += st
            hist = [h for h in hist if h[1] < W]
            hist.append([ins, 0])
            if ins.kind == "branch":
                snaps.setdefault(ins.target, []).append([list(x) for x in hist])
                if ins.mn == "s_branch": hist = []
        self.nnops = nins
        return out
```

```python
from gen import *
import gen as G

NEG = f32(-1e30)
MK = 64
def mk(i): return f"s[{MK+2*i}:{MK+2*i+1}]"
MF = "v_mfma_f32_32x32x16_bf16"
P_GA, P_G, P_SB, P_GB, P_B2, P_CONST, P_B1 = [L_PERS + i * 256 for i in range(7)]

def st2(g, stores, tag="ST"):
    a = g.a
    ls, lj = a.newlabel("SLOW"), a.newlabel("JOIN")
    g.I(f"s_cmp_eq_u32 {sFAST}, 0"); g.I(f"s_cbranch_scc1 {ls}")
    for s in stores: a.lines.append(s)
    g.I(f"s_branch {lj}")
    a.label(ls)
    for s in stores:
        if tag is None: a.lines.append(s + " sc1")
        else: g.I(s + " sc1", tag)
    a.label(lj)

def handoff(g, name, my_off, base_off, nflags):
    I = g.I; a = g.a
    a.vmwait0(); I("s_barrier")
    I(f"s_cmp_lg_u32 {sW}, 0"); I(f"s_cbranch_scc1 L_{name}_W")
    I(f"v_mov_b32 v28, {sTAG}"); I("v_lshlrev_b32 v29, 2, v1")
    I("s_mov_b64 exec, 1")
    st2(g, [f"buffer_store_dword v28, v29, {srd(SWS)}, {my_off} offen"], tag=None)
    I(f"s_mov_b64 exec, {(1 << nflags) - 1}")
    I(f"s_mov_b32 {sSPIN}, 0")
    a.label(f"L_{name}_P")
    a.lines.append(f"buffer_load_dword v30, v29, {srd(SWS)}, {base_off} offen sc1")
    g.spin_guard(f"L_{name}_X")
    I("s_waitcnt vmcnt(0)")
    I(f"v_cmp_ne_u32 vcc, {sTAG}, v30"); I(f"s_cbranch_vccnz L_{name}_P")
    a.label(f"L_{name}_X")
    I("s_waitcnt vmcnt(0)")
    I("s_mov_b64 exec, -1")
    a.label(f"L_{name}_W")
    I("s_barrier")

def prep2(g):
    I = g.I; a = g.a
    R = 128
    I("v_lshrrev_b32 v21, 1, v1"); I("v_lshlrev_b32 v21, 3, v21"); I("v_lshlrev_b32 v22, 5, v1"); I("v_lshlrev_b32 v23, 1, v1")
    I(f"s_lshl_b32 {sT[0]}, {sCB}, 8"); I(f"s_add_u32 {sT[0]}, {sT[0]}, {WS_MODG + 4096}")
    I(f"s_add_u32 {sT[1]}, {sT[0]}, 4096"); I(f"s_mov_b32 {sT[2]}, {WS_MODG + 3*2048}"); I(f"s_lshl_b32 {sT[3]}, {sCB}, 7")
    I(f"s_mul_i32 {sT[4]}, {sCB}, 7"); I(f"v_add_u32 v{R+64}, {sT[4]}, v20")
    I(f"v_and_b32 v{R+65}, 1, v{R+64}"); I(f"v_lshrrev_b32 v{R+64}, 1, v{R+64}"); I(f"v_lshlrev_b32 v{R+64}, 7, v{R+64}")
    I(f"v_lshl_add_u32 v{R+64}, v{R+65}, 1, v{R+64}"); I(f"v_and_b32 v{R+65}, 31, v1"); I(f"v_lshl_add_u32 v{R+64}, v{R+65}, 2, v{R+64}")
    for i in range(4): a.lines.append(f"buffer_load_ushort v{R+66+i}, v{R+64}, {srd(SB1)}, 0 offen offset:{i*128}")
    I(f"s_mov_b32 {sSPIN}, 0")
    a.label("L_PREP2")
    L = a.lines.append
    L(f"buffer_load_dwordx2 v[{R}:{R+1}], v21, {srd(SWS)}, {sT[0]} offen sc1")
    L(f"buffer_load_dwordx2 v[{R+2}:{R+3}], v21, {srd(SWS)}, {sT[1]} offen sc1")
    L(f"buffer_load_dwordx2 v[{R+4}:{R+5}], v21, {srd(SWS)}, {sT[0]} offen offset:2048 sc1")
    L(f"buffer_load_dwordx2 v[{R+6}:{R+7}], v21, {srd(SWS)}, {sT[1]} offen offset:2048 sc1")
    L(f"buffer_load_ushort v{R+8}, v23, {srd(SB2)}, {sT[3]} offen")
    for j in range(2):
        L(f"buffer_load_dwordx4 v[{R+12+4*j}:{R+15+4*j}], v22, {srd(SWS)}, {sT[2]} offen offset:{16*j} sc1")
        L(f"buffer_load_dwordx4 v[{R+20+4*j}:{R+23+4*j}], v22, {srd(SWS)}, {sT[2]} offen offset:{2048+16*j} sc1")
    g.spin_guard("L_PREP2X")
    I("s_waitcnt vmcnt(0)")
    tags = [R+1, R+3, R+5, R+7] + [R+13+2*i for i in range(8)]
    I(f"v_xor_b32 v{R+9}, {sTAG}, v{tags[0]}")
    for t in tags[1:]:
        I(f"v_xor_b32 v{R+10}, {sTAG}, v{t}"); I(f"v_or_b32 v{R+9}, v{R+9}, v{R+10}")
    I(f"v_cmp_ne_u32 vcc, 0, v{R+9}"); I("s_cbranch_vccnz L_PREP2")
    a.label("L_PREP2X")
    I("s_waitcnt vmcnt(0)")
    I("v_and_b32 v21, 1, v1"); I("v_lshlrev_b32 v22, 4, v21"); I("v_sub_u32 v22, 16, v22")
    for r in (R, R+2, R+4, R+6):
        I(f"v_lshlrev_b32 v{r}, v22, v{r}"); I(f"v_and_b32 v{r}, 0xffff0000, v{r}")
    I(f"v_lshlrev_b32 v{R+8}, 16, v{R+8}")
    I(f"v_add_f32 v{R+2}, 1.0, v{R+2}"); I(f"v_cvt_pk_bf16_f32 v{R+2}, v{R+2}, v{R+2}"); I(f"v_and_b32 v{R+2}, 0xffff0000, v{R+2}")
    I("v_and_b32 v22, 0x38, v1"); I("v_lshl_add_u32 v22, v21, 2, v22"); I("v_bfe_u32 v23, v1, 1, 2"); I("v_add_u32 v22, v22, v23")
    I("v_lshlrev_b32 v22, 2, v22"); I(f"v_add_u32 v22, {L_PERS}, v22")
    for i, r in enumerate((R, R+2, R+4, R+6, R+8)): I(f"ds_write_b32 v22, v{r} offset:{i*256}")
    I(f"v_lshlrev_b32 v{R+64}, 2, v1"); I(f"v_add_u32 v{R+64}, {P_B1}, v{R+64}")
    for i in range(4):
        I(f"v_lshlrev_b32 v{R+66+i}, 16, v{R+66+i}"); I(f"ds_write_b32 v{R+64}, v{R+66+i} offset:{i*256}")
    S, Gg = R + 32, R + 40
    for i in range(4):
        I(f"v_lshlrev_b32 v{S+2*i}, 16, v{R+12+2*i}"); I(f"v_and_b32 v{S+2*i+1}, 0xffff0000, v{R+12+2*i}")
        I(f"v_lshlrev_b32 v{Gg+2*i}, 16, v{R+20+2*i}"); I(f"v_and_b32 v{Gg+2*i+1}, 0xffff0000, v{R+20+2*i}")
        I(f"v_add_f32 v{Gg+2*i}, 1.0, v{Gg+2*i}"); I(f"v_add_f32 v{Gg+2*i+1}, 1.0, v{Gg+2*i+1}")
        I(f"v_cvt_pk_bf16_f32 v{R+10}, v{Gg+2*i}, v{Gg+2*i+1}")
        I(f"v_lshlrev_b32 v{Gg+2*i}, 16, v{R+10}"); I(f"v_and_b32 v{Gg+2*i+1}, 0xffff0000, v{R+10}")
    C = R + 48
    for c in range(5): I(f"v_mov_b32 v{C+c}, 0")
    for i in range(8):
        I(f"v_add_f32 v{C}, v{C}, v{Gg+i}"); I(f"v_fmac_f32 v{C+1}, v{Gg+i}, v{Gg+i}"); I(f"v_fmac_f32 v{C+2}, v{Gg+i}, v{S+i}")
        I(f"v_add_f32 v{C+3}, v{C+3}, v{S+i}"); I(f"v_fmac_f32 v{C+4}, v{S+i}, v{S+i}")
    for mod in ("quad_perm:[1,0,3,2]", "quad_perm:[2,3,0,1]", "row_ror:4", "row_ror:8"):
        for c in range(5): I(f"v_add_f32_dpp v{C+c}, v{C+c}, v{C+c} {mod} row_mask:0xf bank_mask:0xf")
    for sw in ("v_permlane16_swap_b32", "v_permlane32_swap_b32"):
        for c in range(5): I(f"v_mov_b32 v{C+8+c}, v{C+c}")
        for c in range(5): I(f"{sw} v{C+c}, v{C+8+c}")
        for c in range(5): I(f"v_add_f32 v{C+c}, v{C+c}, v{C+8+c}")
    for c in range(5): I(f"v_mul_f32 v{C+c}, {f32(1/512):#x}, v{C+c}")
    I(f"v_mov_b32 v22, {P_CONST}")
    I(f"ds_write_b128 v22, v[{C}:{C+3}]"); I(f"ds_write_b32 v22, v{C+4} offset:16")
    I("s_waitcnt lgkmcnt(0)")

def attention(g):
    I = g.I; a = g.a
    SA, SB, NM, ACC, P, VB = 32, 48, 64, 80, 96, 112
    I("v_and_b32 v9, 31, v1"); I("v_lshlrev_b32 v10, 2, v20"); I("v_sub_u32 v9, v9, v10")
    for i in range(16): I(f"v_cmp_gt_i32 {mk(i)}, {8*(i>>2) + (i&3)}, v9")
    for r in range(VB, VB + 16): I(f"v_mov_b32 v{r}, 0x3f803f80")
    I(f"s_mul_i32 {sT[0]}, {sKH}, {12*K}"); I(f"s_lshl_b32 {sT[1]}, {sTB}, 10"); I(f"s_add_u32 {sT[0]}, {sT[0]}, {sT[1]}")
    I(f"v_add_u32 v9, {sT[0]}, v2")
    I("v_and_b32 v10, 15, v1"); I("v_lshlrev_b32 v10, 4, v10"); I("v_lshl_add_u32 v10, v20, 8, v10")
    I(f"s_add_u32 {sT[0]}, {sT[0]}, {24*K}"); I(f"v_add_u32 v10, {sT[0]}, v10")
    I(f"v_mov_b32 v13, {NEG:#x}"); I("v_mov_b32 v14, 0")
    for i in range(16): I(f"v_cndmask_b32 v{SA+i}, v14, v13, {mk(i)}")
    I(f"s_cmp_eq_u32 {sW}, 1"); I("s_cbranch_scc0 L_NOPREP2")
    prep2(g)
    a.label("L_NOPREP2")
    I(f"s_cmp_lg_u32 {sW}, 0"); I("s_cbranch_scc1 L_KVW")
    I(f"s_lshl_b32 {sT[0]}, {sHQ}, 4"); I(f"s_add_u32 {sT[0]}, {sT[0]}, {sRB}"); I(f"s_lshl_b32 {sT[0]}, {sT[0]}, 8"); I(f"s_add_u32 {sT[0]}, {sT[0]}, {WS_KVF - 512}")
    I("v_lshlrev_b32 v21, 7, v1")
    I(f"s_mov_b32 {sT[1]}, 0x3f"); I(f"s_cmp_eq_u32 {sRB}, 1"); I(f"s_cselect_b32 {sT[1]}, 0x3c, {sT[1]}")
    I(f"s_cmp_eq_u32 {sRB}, 0"); I(f"s_cselect_b32 {sT[1]}, 0x30, {sT[1]}")
    I(f"s_mov_b32 exec_lo, {sT[1]}"); I("s_mov_b32 exec_hi, 0")
    I(f"s_mov_b32 {sSPIN}, 0")
    a.label("L_KVP")
    a.lines.append(f"buffer_load_dword v22, v21, {srd(SWS)}, {sT[0]} offen sc1")
    g.spin_guard("L_KVX")
    I("s_waitcnt vmcnt(0)")
    I(f"v_cmp_ne_u32 vcc, {sTAG}, v22"); I("s_cbranch_vccnz L_KVP")
    a.label("L_KVX")
    I("s_waitcnt vmcnt(0)"); I("s_mov_b64 exec, -1")
    a.label("L_KVW")
    I(f"s_lshr_b32 {sT[0]}, {sW}, 2"); I(f"s_lshl_b32 {sT[0]}, {sT[0]}, 21")
    I(f"s_lshl_b32 {sT[1]}, {sHQ}, 2"); I(f"s_lshl_b32 {sT[2]}, {sTY}, 1"); I(f"s_add_u32 {sT[1]}, {sT[1]}, {sT[2]}")
    I(f"s_and_b32 {sT[2]}, {sTB}, 1"); I(f"s_add_u32 {sT[1]}, {sT[1]}, {sT[2]}"); I(f"s_lshl_b32 {sT[1]}, {sT[1]}, 16"); I(f"s_add_u32 {sT[0]}, {sT[0]}, {sT[1]}")
    I(f"s_lshl_b32 {sT[1]}, {sRB}, 12"); I(f"s_add_u32 {sT[0]}, {sT[0]}, {sT[1]}")
    I(f"s_mul_i32 {sT[1]}, {sKH}, {6*K}"); I(f"s_add_u32 {sT[0]}, {sT[0]}, {sT[1]}"); I(f"s_add_u32 {sT[0]}, {sT[0]}, {WS_KF - 8*K}")
    I(f"s_mul_i32 {sT[2]}, {sW}, {6*K}"); I(f"s_add_u32 {sT[1]}, {sT[0]}, {3*K}")
    I("s_barrier")
    g.stamp(5, 28)
    I(f"s_mov_b32 m0, {sT[2]}")
    for i in range(3): I(f"buffer_load_dwordx4 v2, {srd(SWS)}, {sT[0]} offen offset:{i*K} sc1 lds", "KV")
    I(f"s_add_u32 m0, {sT[2]}, {3*K}")
    for i in range(3): I(f"buffer_load_dwordx4 v2, {srd(SWS)}, {sT[1]} offen offset:{i*K} sc1 lds", "KV")
    I(f"s_mov_b32 {sT[5]}, {WS_REG}")
    I(f"buffer_load_dwordx4 v[24:27], v2, {srd(SWS)}, {sT[5]} offen sc1", "REG")
    T0 = sT[6]
    I(f"s_lshl_b32 {sT[0]}, {sRB}, 2"); I(f"s_add_u32 {sT[0]}, {sT[0]}, {sTB}"); I(f"s_min_u32 {sT[0]}, {sT[0]}, 8"); I(f"s_sub_u32 {T0}, 8, {sT[0]}")
    a.vmwait("KV"); I("s_barrier")
    g.stamp(6, 28)
    kb = lambda t: 96 + 4 * (t & 3)
    sb3 = lambda t: (SA, SB, NM)[(8 - t) % 3]
    for t in (8, 7, 6, 5): I(f"ds_read_b128 {vr(kb(t),4)}, v9 offset:{t*K}")
    I("v_mov_b32 v11, v13"); I("v_mov_b32 v12, v13")
    I("s_waitcnt lgkmcnt(3)"); I(f"{MF} {vr(SA,16)}, {vr(kb(8),4)}, v[4:7], {vr(SA,16)}")
    I("s_waitcnt lgkmcnt(2)"); I(f"{MF} {vr(SB,16)}, {vr(kb(7),4)}, v[4:7], 0")
    for t in range(8, -1, -1):
        if t - 4 >= 0: I(f"ds_read_b128 {vr(kb(t-4),4)}, v9 offset:{(t-4)*K}")
        if t - 2 >= 0:
            d = sb3(t - 2)
            if t - 2 == 0:
                for i in range(16): I(f"v_cndmask_b32 v{d+i}, v13, v14, {mk(i)}")
            I(f"s_waitcnt lgkmcnt({min(2, t-2)})")
            I(f"{MF} {vr(d,16)}, {vr(kb(t-2),4)}, v[4:7], {vr(d,16) if t-2 == 0 else 0}")
        s = sb3(t)
        for i in range(0, 16, 4):
            I(f"v_max3_f32 v11, v{s+i}, v{s+i+1}, v11"); I(f"v_max3_f32 v12, v{s+i+2}, v{s+i+3}, v12")
        if t > 0:
            I(f"s_cmp_eq_u32 {T0}, {t}"); I("s_cbranch_scc1 L_P1X")
    a.label("L_P1X")
    I("s_waitcnt lgkmcnt(0)")
    kb2 = lambda t: 104 + 4 * (t & 1)
    vb = lambda t, ks: VB + 8 * (t & 1) + 4 * ks
    def vread(t):
        I("s_mov_b32 exec_lo, 0xffff"); I("s_mov_b32 exec_hi, 0xffff")
        for ks in range(2): I(f"ds_read_b128 {vr(vb(t,ks),4)}, v10 offset:{t*K + ks*512}")
        I("s_mov_b64 exec, -1")
    for t in (8, 7): I(f"ds_read_b128 {vr(kb2(t),4)}, v9 offset:{t*K}")
    vread(8)
    I("v_max_f32 v11, v11, v12"); I("v_mov_b32 v12, v11"); I("v_permlane32_swap_b32 v11, v12"); I("v_max_f32 v11, v11, v12")
    I("v_sub_f32 v11, 0, v11")
    for i in range(16): I(f"v_cndmask_b32 v{SA+i}, v11, v13, {mk(i)}")
    I("s_waitcnt lgkmcnt(0)")
    I(f"{MF} {vr(SA,16)}, {vr(kb2(8),4)}, v[4:7], {vr(SA,16)}")
    for i in range(16): I(f"v_mov_b32 v{NM+i}, v11")
    I(f"s_getreg_b32 {sT[0]}, hwreg(HW_REG_XCC_ID)"); I(f"s_and_b32 {sT[0]}, {sT[0]}, 15"); I(f"s_or_b32 {sT[0]}, {sT[0]}, {sTAG}")
    I(f"s_mov_b32 {sSPIN}, 0")
    a.vmwait("REG")
    a.label("L_REGC")
    for i in range(4): I(f"v_xor_b32 v{24+i}, {sT[0]}, v{24+i}")
    I("v_or_b32 v24, v24, v25"); I("v_or3_b32 v24, v24, v26, v27")
    I("v_cmp_lt_u32 vcc, 15, v24"); I("s_cbranch_vccz L_REGOK")
    g.spin_guard("L_REGOK")
    a.lines.append(f"buffer_load_dwordx4 v[24:27], v2, {srd(SWS)}, {sT[5]} offen sc1")
    I("s_waitcnt vmcnt(0)"); I("s_branch L_REGC")
    a.label("L_REGOK")
    I("v_cmp_eq_u32 vcc, 0, v24"); I(f"s_lshl_b32 {sT[0]}, {sG}, 3"); I(f"s_lshr_b64 vcc, vcc, {sT[0]}"); I(f"s_and_b32 {sT[0]}, vcc_lo, 0xff")
    I(f"s_cmp_eq_u32 {sT[0]}, 0xff"); I(f"s_cselect_b32 {sFAST}, {0 if g.force_slow else 1}, 0")
    I(f"s_or_b32 {sT[0]}, s2, {sW}"); I("s_cbranch_scc1 L_NOBUMP")
    I(f"s_add_u32 {sT[0]}, {sEP}, 1"); I(f"v_mov_b32 v24, {sT[0]}"); I("s_mov_b64 exec, 1")
    a.lines.append(f"buffer_store_dword v24, v14, {srd(SWS)}, 0 offen sc1")
    I("s_mov_b64 exec, -1")
    a.label("L_NOBUMP")
    I(f"s_lshl_b32 {sT[1]}, {sCB}, 16"); I(f"s_lshl_b32 {sT[2]}, {sW}, 13"); I(f"s_add_u32 {sT[1]}, {sT[1]}, {sT[2]}"); I(f"s_add_u32 {sT[1]}, {sT[1]}, {WS_WOF}")
    I(f"s_add_u32 {sT[2]}, {sT[2]}, {L_WO}")
    I(f"s_mul_i32 {sT[3]}, {sCB}, 7"); I(f"s_add_u32 {sT[3]}, {sT[3]}, {sW}"); I(f"s_lshl_b32 {sT[3]}, {sT[3]}, 15"); I(f"s_add_u32 {sT[3]}, {sT[3]}, {WS_W1F}")
    I(f"s_lshl_b32 {sE1}, {sCB}, 3"); I(f"s_add_u32 {sE1}, {sE1}, {sW}"); I(f"s_mul_i32 {sE1}, {sE1}, {28*K}"); I(f"s_add_u32 {sE1}, {sE1}, {WS_W2F}")
    I(f"s_cmp_eq_u32 {sW}, 7"); I(f"s_cselect_b32 {sE4}, {sE1}, {sT[3]}")
    def pf(n, track=True):
        out = []
        if n < 8:
            out.append(f"s_add_u32 m0, {sT[2]}, {(n>>2)*4096}"); out.append(f"s_add_u32 {sT[4]}, {sT[1]}, {(n>>2)*4096}")
            out.append(f"buffer_load_dwordx4 v2, {srd(SWS)}, {sT[4]} offen offset:{(n&3)*K} sc1 lds")
        else:
            i = n - 8
            out.append(f"s_add_u32 {sT[4]}, {sE4}, {(i>>2)*4096}")
            out.append(f"buffer_load_dwordx4 {vr(128+4*i,4)}, v2, {srd(SWS)}, {sT[4]} offen offset:{(i&3)*K} sc1")
        for o in out:
            if track: I(o, "WO" if n < 8 else "W1")
            else: a.lines.append(o)
    g.pf = pf
    PER = 3; LAST = 2
    npf = PER * (9 - LAST)
    g.npf = npf
    for t in range(8, -1, -1):
        cur = (SA, SB)[t & 1]; nxt = (SA, SB)[(t - 1) & 1]
        if t < 8: I("s_waitcnt lgkmcnt(0)")
        if t >= 1:
            if t == 1:
                for i in range(16): I(f"v_cndmask_b32 v{nxt+i}, v13, v11, {mk(i)}")
            I(f"{MF} {vr(nxt,16)}, {vr(kb2(t-1),4)}, v[4:7], {vr(nxt,16) if t == 1 else vr(NM,16)}")
            if t >= 2: I(f"ds_read_b128 {vr(kb2(t-2),4)}, v9 offset:{(t-2)*K}")
            vread(t - 1)
        if t >= LAST:
            for n in range(PER * (8 - t), PER * (9 - t)): pf(n)
        for i in range(8): I(f"v_exp_f32 v{cur+i}, v{cur+i}")
        I(f"v_exp_f32 v{cur+8}, v{cur+8}")
        for i in range(4): I(f"v_cvt_pk_bf16_f32 v{P+i}, v{cur+2*i}, v{cur+2*i+1}")
        for i in range(9, 12): I(f"v_exp_f32 v{cur+i}, v{cur+i}")
        I(f"{MF} {vr(ACC,16)}, {vr(vb(t,0),4)}, {vr(P,4)}, {vr(ACC,16) if t < 8 else 0}")
        for i in range(12, 16): I(f"v_exp_f32 v{cur+i}, v{cur+i}")
        for i in range(4, 8): I(f"v_cvt_pk_bf16_f32 v{P+i}, v{cur+2*i}, v{cur+2*i+1}")
        if t > 0: I(f"s_cmp_eq_u32 {T0}, {t}")
        I(f"{MF} {vr(ACC,16)}, {vr(vb(t,1),4)}, {vr(P+4,4)}, {vr(ACC,16)}")
        if t > 0: I(f"s_cbranch_scc1 L_P2X{max(t, LAST)}")
    I(f"s_branch L_P2X{LAST}")
    for t in range(8, LAST, -1):
        a.label(f"L_P2X{t}")
        for n in range(PER * (9 - t), PER * (10 - t)): pf(n, track=False)
    a.label(f"L_P2X{LAST}")
    I("s_waitcnt lgkmcnt(0)")
    I(f"s_lshl_b32 {sT[0]}, {sRB}, 2"); I(f"s_add_u32 {sT[0]}, {sT[0]}, {sTB}"); I(f"s_lshl_b32 {sT[0]}, {sT[0]}, 5")
    I(f"s_lshl_b32 {sT[1]}, {sHQ}, 1"); I(f"s_add_u32 {sT[1]}, {sT[1]}, {sTY}")
    I(f"s_lshl_b32 {sT[3]}, {sT[1]}, 1"); I(f"s_add_u32 {sT[3]}, {sT[3]}, {sKH}"); I(f"s_add_u32 {sT[0]}, {sT[0]}, {sT[3]}")
    I(f"s_lshl_b32 {sT[0]}, {sT[0]}, 10"); I(f"s_add_u32 {sT[0]}, {sT[0]}, {WS_OFR}")
    I(f"v_rcp_f32 v11, v{ACC+8}")
    for i in range(8): I(f"v_mul_f32 v{ACC+i}, v{ACC+i}, v11")
    for i in range(4): I(f"v_cvt_pk_bf16_f32 v{P+i}, v{ACC+2*i}, v{ACC+2*i+1}")
    st2(g, [f"buffer_store_dwordx4 {vr(P,4)}, v2, {srd(SWS)}, {sT[0]} offen"])
    g.stamp(7, 28)
    I(f"s_lshl_b32 {sT[0]}, {sRB}, 7"); I(f"s_lshl_b32 {sT[1]}, {sT[1]}, 2"); I(f"s_add_u32 {sT[0]}, {sT[0]}, {sT[1]}"); I(f"s_add_u32 {sT[0]}, {sT[0]}, {WS_OF}")
    I(f"s_lshr_b32 {sT[1]}, {sR64}, 1"); I(f"s_lshl_b32 {sT[1]}, {sT[1]}, 7"); I(f"s_add_u32 {sT[1]}, {sT[1]}, {WS_OF}")

def red_addrs_read(g):
    I = g.I
    I("v_lshrrev_b32 v21, 3, v1"); I("v_and_b32 v22, 7, v1")
    I("v_bfe_u32 v23, v21, 1, 1"); I("v_lshl_add_u32 v23, v23, 3, v21"); I("v_xor_b32 v23, v23, v22"); I("v_lshlrev_b32 v23, 4, v23")
    I("v_lshl_add_u32 v26, v21, 8, v23"); I(f"s_lshl_b32 {sT[0]}, {sW}, 11"); I(f"v_add_u32 v26, {sT[0]}, v26"); I("v_xor_b32 v27, 128, v26")

def red_addr_write(g, dst, sbase):
    I = g.I
    I("v_and_b32 v21, 31, v1"); I("v_and_b32 v22, 7, v1"); I("v_bfe_u32 v23, v1, 1, 1"); I("v_lshl_add_u32 v22, v23, 3, v22")
    I("v_lshrrev_b32 v23, 5, v1"); I("v_xor_b32 v22, v22, v23"); I("v_lshlrev_b32 v22, 4, v22")
    I(f"v_lshl_add_u32 v{dst}, v21, 8, v22"); I(f"v_add_u32 v{dst}, {sbase}, v{dst}")

def red_sum(g, R):
    I = g.I
    for p in range(4):
        I(f"ds_read_b128 {vr(R+8*p,4)}, v26 offset:{p*16*K}"); I(f"ds_read_b128 {vr(R+8*p+4,4)}, v27 offset:{p*16*K}")

def red_add(g, R):
    I = g.I
    for i in range(0, 8, 2):
        I(f"v_pk_add_f32 {vr(R+i,2)}, {vr(R+i,2)}, {vr(R+8+i,2)}"); I(f"v_pk_add_f32 {vr(R+16+i,2)}, {vr(R+16+i,2)}, {vr(R+24+i,2)}")
    for i in range(0, 8, 2): I(f"v_pk_add_f32 {vr(R+i,2)}, {vr(R+i,2)}, {vr(R+16+i,2)}")

def phase4(g):
    I = g.I; a = g.a
    handoff(g, "OH", sT[0], sT[1], 16)
    g.stamp(8, 28)
    I(f"s_lshl_b32 {sT[0]}, {sR64}, 1"); I(f"s_add_u32 {sT[0]}, {sT[0]}, {sKH}"); I(f"s_lshl_b32 {sT[0]}, {sT[0]}, 15")
    I(f"s_lshl_b32 {sT[1]}, {sTB}, 13"); I(f"s_add_u32 {sT[0]}, {sT[0]}, {sT[1]}"); I(f"s_add_u32 {sT[0]}, {sT[0]}, {WS_OFR}"); I(f"s_add_u32 {sT[1]}, {sT[0]}, 4096")
    for i in range(8):
        I(f"buffer_load_dwordx4 {vr(32+4*i,4)}, v2, {srd(SWS)}, {sT[i>>2]} offen offset:{(i&3)*K} sc1", f"O{i}")
    I("v_lshrrev_b32 v21, 3, v1"); I("v_and_b32 v22, 7, v1"); I("v_lshlrev_b32 v25, 10, v21"); I("v_lshl_add_u32 v25, v22, 4, v25")
    I(f"s_lshl_b32 {sRLD}, {sR64}, 16"); I(f"s_lshl_b32 {sT[1]}, {sW}, 13"); I(f"s_add_u32 {sRLD}, {sRLD}, {sT[1]}"); I(f"s_lshl_b32 {sT[1]}, {sCB}, 7"); I(f"s_add_u32 {sRLD}, {sRLD}, {sT[1]}")
    I(f"buffer_load_dwordx4 v[12:15], v25, {srd(SX)}, {sRLD} offen", "XP")
    I(f"s_lshl_b32 {sT[0]}, {sTB}, 14"); I(f"s_add_u32 {sT[0]}, {sT[0]}, {L_WO}"); I(f"v_add_u32 v24, {sT[0]}, v2")
    wb = lambda i, j: 96 + 8 * (i & 3) + 4 * j
    def wread(i):
        for j in range(2): I(f"ds_read_b128 {vr(wb(i,j),4)}, v24 offset:{(2*i+j)*K}")
    for i in range(4): wread(i)
    for n in range(g.npf, 40): g.pf(n)
    I(f"s_lshl_b32 {sT[0]}, {sTB}, 14"); I(f"s_lshl_b32 {sT[1]}, {sKH}, 13"); I(f"s_add_u32 {sT[0]}, {sT[0]}, {sT[1]}")
    red_addr_write(g, 16, sT[0])
    red_addrs_read(g)
    for i in range(8):
        a.vmwait(f"O{i}", f"lgkmcnt({2*min(3, 7-i)})")
        for j in range(2):
            acc = vr(64 + 16 * j, 16)
            I(f"{MF} {acc}, {vr(wb(i,j),4)}, {vr(32+4*i,4)}, {acc if i else 0}")
        if i + 4 < 8: wread(i + 4)
    for j in range(2):
        for jj in range(4):
            u = j * 8 + 2 * jj
            if u: I(f"v_xor_b32 v17, {u*16}, v16")
            I(f"ds_write_b128 {'v17' if u else 'v16'}, {vr(64+16*j+4*jj,4)}")
    I("v_and_b32 v22, 7, v1"); I("v_lshlrev_b32 v24, 5, v22"); I(f"v_add_u32 v24, {L_PERS}, v24"); I(f"v_mov_b32 v23, {P_CONST}")
    GA, GG, SBv, CO = 96, 104, 112, 120
    for v, off in ((GA, 0), (GG, 256), (SBv, 512)):
        I(f"ds_read_b128 {vr(v,4)}, v24 offset:{off}"); I(f"ds_read_b128 {vr(v+4,4)}, v24 offset:{off+16}")
    I(f"ds_read_b128 {vr(CO,4)}, v23"); I(f"ds_read_b32 v{CO+4}, v23 offset:16")
    I("s_waitcnt lgkmcnt(0)"); I("s_barrier")
    red_sum(g, 32)
    a.vmwait("XP")
    X2 = 4; U = 64
    for i in range(4):
        I(f"v_lshlrev_b32 v{X2+i}, 16, v{12+i}"); I(f"v_and_b32 v{X2+4+i}, 0xffff0000, v{12+i}")
    I("s_waitcnt lgkmcnt(0)")
    red_add(g, 32)
    for i in range(0, 8, 2): I(f"v_pk_fma_f32 {vr(X2+i,2)}, {vr(GA+i,2)}, {vr(32+i,2)}, {vr(X2+i,2)}")
    for i in range(0, 8, 2): I(f"v_pk_mul_f32 {vr(U+i,2)}, {vr(X2+i,2)}, {vr(GG+i,2)}")
    T = 72
    I(f"v_pk_add_f32 {vr(T,2)}, {vr(X2,2)}, {vr(X2+2,2)}"); I(f"v_pk_mul_f32 {vr(T+2,2)}, {vr(X2,2)}, {vr(X2,2)}")
    I(f"v_pk_add_f32 {vr(T+4,2)}, {vr(U,2)}, {vr(U+2,2)}"); I(f"v_pk_mul_f32 {vr(T+6,2)}, {vr(U,2)}, {vr(U,2)}")
    I(f"v_pk_mul_f32 {vr(T+8,2)}, {vr(U,2)}, {vr(GG,2)}"); I(f"v_pk_mul_f32 {vr(T+10,2)}, {vr(U,2)}, {vr(SBv,2)}")
    for i in range(2, 8, 2):
        if i > 2:
            I(f"v_pk_add_f32 {vr(T,2)}, {vr(T,2)}, {vr(X2+i,2)}"); I(f"v_pk_add_f32 {vr(T+4,2)}, {vr(T+4,2)}, {vr(U+i,2)}")
        I(f"v_pk_fma_f32 {vr(T+2,2)}, {vr(X2+i,2)}, {vr(X2+i,2)}, {vr(T+2,2)}"); I(f"v_pk_fma_f32 {vr(T+6,2)}, {vr(U+i,2)}, {vr(U+i,2)}, {vr(T+6,2)}")
        I(f"v_pk_fma_f32 {vr(T+8,2)}, {vr(U+i,2)}, {vr(GG+i,2)}, {vr(T+8,2)}"); I(f"v_pk_fma_f32 {vr(T+10,2)}, {vr(U+i,2)}, {vr(SBv+i,2)}, {vr(T+10,2)}")
    Sd = [84, 85, 86, 88, 89, 90]
    for s in range(6): I(f"v_add_f32 v{Sd[s]}, v{T+2*s}, v{T+2*s+1}")
    def bfly():
        for mod in ("quad_perm:[1,0,3,2]", "quad_perm:[2,3,0,1]", "row_half_mirror"):
            for s in Sd: I(f"v_add_f32_dpp v{s}, v{s}, v{s} {mod} row_mask:0xf bank_mask:0xf")
    bfly()
    I(f"v_mov_b32 v87, {sTAG}"); I(f"v_mov_b32 v91, {sTAG}")
    I("v_lshrrev_b32 v21, 3, v1"); I("v_lshlrev_b32 v21, 8, v21"); I("v_lshl_add_u32 v22, v22, 5, v21")
    I(f"s_lshl_b32 {sT[0]}, {sR64}, 14"); I(f"s_lshl_b32 {sT[1]}, {sW}, 11"); I(f"s_add_u32 {sT[0]}, {sT[0]}, {sT[1]}"); I(f"s_add_u32 {sT[0]}, {sT[0]}, {WS_STAT}")
    I(f"s_lshl_b32 {sT[1]}, {sCB}, 5"); I(f"s_add_u32 {sT[1]}, {sT[1]}, {sT[0]}")
    I("s_mov_b32 exec_lo, 0x01010101"); I("s_mov_b32 exec_hi, 0x01010101")
    st2(g, [f"buffer_store_dwordx4 v[84:87], v21, {srd(SWS)}, {sT[1]} offen", f"buffer_store_dwordx4 v[88:91], v21, {srd(SWS)}, {sT[1]} offen offset:16"])
    I("s_mov_b64 exec, -1")
    g.stamp(9, 28)
    I(f"s_mov_b32 {sSPIN}, 0")
    a.label("L_STP")
    a.lines.append(f"buffer_load_dwordx4 v[84:87], v22, {srd(SWS)}, {sT[0]} offen sc1")
    a.lines.append(f"buffer_load_dwordx4 v[88:91], v22, {srd(SWS)}, {sT[0]} offen offset:16 sc1")
    g.spin_guard("L_STX")
    I("s_waitcnt vmcnt(0)")
    I(f"v_xor_b32 v87, {sTAG}, v87"); I(f"v_xor_b32 v91, {sTAG}, v91"); I("v_or_b32 v87, v87, v91")
    I("v_cmp_ne_u32 vcc, 0, v87"); I("s_cbranch_vccnz L_STP")
    a.label("L_STX")
    a.vmwait0()
    g.stamp(10, 28)
    bfly()
    for s in Sd: I(f"v_mul_f32 v{s}, {f32(1/512):#x}, v{s}")
    m1, m2, m3, m4, m5, m6 = [f"v{s}" for s in Sd]
    G1, G2, GS, B1, B2 = [f"v{CO+i}" for i in range(5)]
    eps = f"{f32(1e-5):#x}"
    I(f"v_fma_f32 v72, -{m1}, {m1}, {m2}"); I("v_max_f32 v72, 0, v72"); I(f"v_add_f32 v72, {eps}, v72"); I("v_rsq_f32 v72, v72")
    I(f"v_fma_f32 v73, -{m1}, {G1}, {m3}")
    I(f"v_fma_f32 v74, -{m1}, {GS}, {m6}")
    I(f"v_fma_f32 v75, {m1}, {G2}, -{m5}"); I(f"v_sub_f32 v75, v75, {m5}"); I(f"v_fma_f32 v75, {m1}, v75, {m4}")
    I(f"v_fma_f32 v73, v72, v73, {B1}")
    I("v_add_f32 v74, v74, v74"); I("v_fma_f32 v75, v72, v75, v74"); I(f"v_fma_f32 v75, v72, v75, {B2}")
    I("v_fma_f32 v75, -v73, v73, v75"); I("v_max_f32 v75, 0, v75"); I(f"v_add_f32 v75, {eps}, v75"); I("v_rsq_f32 v76, v75")
    I("v_mul_f32 v77, v73, v76"); I("v_sub_f32 v77, 0, v77")
    I("v_mul_f32 v78, v72, v76"); I(f"v_mul_f32 v79, {m1}, v78"); I("v_sub_f32 v79, 0, v79")
    for i in range(0, 8, 2): I(f"v_pk_fma_f32 {vr(SBv+i,2)}, {vr(SBv+i,2)}, v[76:77], v[76:77] op_sel:[0,0,1] op_sel_hi:[1,0,1]")
    for i in range(0, 8, 2): I(f"v_pk_fma_f32 {vr(SBv+i,2)}, {vr(GG+i,2)}, v[78:79], {vr(SBv+i,2)} op_sel:[0,1,0] op_sel_hi:[1,1,1]")
    for i in range(0, 8, 2): I(f"v_pk_fma_f32 {vr(SBv+i,2)}, {vr(U+i,2)}, v[78:79], {vr(SBv+i,2)} op_sel:[0,0,0] op_sel_hi:[1,0,1]")
    for i in range(4): I(f"v_cvt_pk_bf16_f32 v{32+i}, v{SBv+i}, v{SBv+4+i}")
    I("v_bfe_u32 v21, v1, 1, 2"); I("v_lshlrev_b32 v21, 10, v21"); I("v_and_b32 v22, 1, v1"); I("v_lshl_add_u32 v21, v22, 9, v21")
    I("v_lshrrev_b32 v22, 3, v1"); I("v_lshl_add_u32 v21, v22, 4, v21")
    I(f"s_lshl_b32 {sT[0]}, {sR64}, 16"); I(f"s_lshr_b32 {sT[1]}, {sW}, 2"); I(f"s_lshl_b32 {sT[1]}, {sT[1]}, 15"); I(f"s_add_u32 {sT[0]}, {sT[0]}, {sT[1]}")
    I(f"s_lshl_b32 {sT[1]}, {sCB}, 12"); I(f"s_add_u32 {sT[0]}, {sT[0]}, {sT[1]}"); I(f"s_and_b32 {sT[1]}, {sW}, 3"); I(f"s_lshl_b32 {sT[1]}, {sT[1]}, 7")
    I(f"s_add_u32 {sT[0]}, {sT[0]}, {sT[1]}"); I(f"s_add_u32 {sT[0]}, {sT[0]}, {WS_YFR}")
    st2(g, [f"buffer_store_dwordx4 v[32:35], v21, {srd(SWS)}, {sT[0]} offen"])
    g.stamp(11, 28)

def phase5(g):
    I = g.I; a = g.a
    I(f"s_mul_i32 {sT[2]}, {sCB}, 7"); I(f"s_add_u32 {sT[2]}, {sT[2]}, {sW}")
    I("v_lshrrev_b32 v21, 5, v1"); I("v_lshlrev_b32 v21, 4, v21")
    I(f"s_lshl_b32 {sT[3]}, {sW}, 7"); I(f"s_add_u32 {sT[3]}, {sT[3]}, {P_B1}"); I(f"v_add_u32 v21, {sT[3]}, v21")
    for jj in range(4): I(f"ds_read_b128 {vr(64+4*jj,4)}, v21 offset:{jj*32}")
    I(f"s_lshl_b32 {sT[1]}, {sR64}, 7"); I(f"s_add_u32 {sT[1]}, {sT[1]}, {WS_YF}"); I(f"s_lshl_b32 {sT[0]}, {sCB}, 2"); I(f"s_add_u32 {sT[0]}, {sT[0]}, {sT[1]}")
    handoff(g, "YH", sT[0], sT[1], 8)
    g.stamp(12, 28)
    I(f"s_lshl_b32 {sT[1]}, {sKH}, 15"); I(f"s_lshl_b32 {sT[0]}, {sTB}, 11"); I(f"s_add_u32 {sT[1]}, {sT[1]}, {sT[0]}")
    I(f"s_lshl_b32 {sT[0]}, {sR64}, 16"); I(f"s_add_u32 {sT[0]}, {sT[0]}, {sT[1]}"); I(f"s_add_u32 {sT[0]}, {sT[0]}, {WS_YFR}")
    for st in range(4):
        I(f"s_add_u32 m0, {sT[1]}, {L_WO + st*8*K}")
        if st: I(f"s_add_u32 {sT[0]}, {sT[0]}, {8*K}")
        for i in range(2): I(f"buffer_load_dwordx4 v2, {srd(SWS)}, {sT[0]} offen offset:{i*K} sc1 lds", f"Y{st}")
    I(f"s_cmp_eq_u32 {sW}, 7"); I("s_cbranch_scc0 L_P5GO")
    for st in range(4):
        I(f"s_waitcnt vmcnt({2*(3-st)})"); I("s_barrier")
    I("s_branch L_P5END")
    a.label("L_P5GO")
    I(f"v_add_u32 v24, {L_WO}, v2")
    yb = lambda s, t: 80 + 8 * (s & 3) + 4 * t
    def yread(s):
        for t in range(2): I(f"ds_read_b128 {vr(yb(s,t),4)}, v24 offset:{t*32*K + s*K}")
    for st in range(4):
        a.vmwait(f"Y{st}"); I("s_barrier")
        for s in range(8 * st, 8 * st + 3): yread(s)
        for s in range(8 * st, 8 * st + 8):
            if s + 3 < 8 * st + 8: yread(s + 3)
            I(f"s_waitcnt lgkmcnt({2*min(3, 8*st+7-s)})")
            for t in range(2):
                acc = vr(32 + 16 * t, 16)
                I(f"{MF} {acc}, {vr(128+4*s,4)}, {vr(yb(s,t),4)}, {acc if s else 'v[64:79]'}")
            if s < 28:
                if s % 4 == 0: I(f"s_add_u32 {sT[4]}, {sE1}, {(s>>2)*4096}")
                I(f"buffer_load_dwordx4 {vr(128+4*s,4)}, v2, {srd(SWS)}, {sT[4]} offen offset:{(s&3)*K} sc1", "W2")
    c0 = -2 * 0.7978845608028654 * LOG2E
    I(f"v_mov_b32 v22, {f32(c0*0.044715):#x}"); I(f"v_mov_b32 v23, {f32(c0):#x}"); I("v_mov_b32 v20, 1.0"); I("v_mov_b32 v21, 1.0")
    I(f"s_lshl_b32 {sT[0]}, {sR64}, 1"); I(f"s_mul_i32 {sT[0]}, {sT[0]}, {112*K}"); I(f"s_lshl_b32 {sT[1]}, {sT[2]}, 11"); I(f"s_add_u32 {sT[0]}, {sT[0]}, {sT[1]}")
    I(f"s_add_u32 {sT[0]}, {sT[0]}, {WS_HFR}"); I(f"s_add_u32 {sT[1]}, {sT[0]}, {112*K}")
    for t in range(2):
        Z = 32 + 16 * t; T = 80 + 16 * t
        for i in range(0, 16, 2): I(f"v_pk_mul_f32 {vr(T+i,2)}, {vr(Z+i,2)}, {vr(Z+i,2)}")
        for i in range(0, 16, 2): I(f"v_pk_fma_f32 {vr(T+i,2)}, {vr(T+i,2)}, v[22:23], v[22:23] op_sel:[0,0,1] op_sel_hi:[1,0,1]")
        for i in range(0, 16, 2): I(f"v_pk_mul_f32 {vr(T+i,2)}, {vr(T+i,2)}, {vr(Z+i,2)}")
        for i in range(16): I(f"v_exp_f32 v{T+i}, v{T+i}")
        for i in range(0, 16, 2): I(f"v_pk_add_f32 {vr(T+i,2)}, {vr(T+i,2)}, v[20:21]")
        for i in range(16): I(f"v_rcp_f32 v{T+i}, v{T+i}")
        for i in range(0, 16, 2): I(f"v_pk_mul_f32 {vr(T+i,2)}, {vr(T+i,2)}, {vr(Z+i,2)}")
        for i in range(8): I(f"v_cvt_pk_bf16_f32 v{Z+i}, v{T+2*i}, v{T+2*i+1}")
        st2(g, [f"buffer_store_dwordx4 {vr(Z,4)}, v2, {srd(SWS)}, {sT[t]} offen", f"buffer_store_dwordx4 {vr(Z+4,4)}, v2, {srd(SWS)}, {sT[t]} offen offset:1024"])
    a.label("L_P5END")
    g.stamp(13, 28)

def phase6(g):
    I = g.I; a = g.a
    I(f"s_lshl_b32 {sT[1]}, {sR64}, 7"); I(f"s_add_u32 {sT[1]}, {sT[1]}, {WS_HF}"); I(f"s_lshl_b32 {sT[0]}, {sCB}, 2"); I(f"s_add_u32 {sT[0]}, {sT[0]}, {sT[1]}")
    handoff(g, "HH", sT[0], sT[1], 8)
    g.stamp(14, 28)
    I(f"s_mul_i32 {sT[0]}, {sR64}, {224*K}"); I(f"s_mul_i32 {sT[1]}, {sW}, {28*K}"); I(f"s_add_u32 {sT[0]}, {sT[0]}, {sT[1]}"); I(f"s_add_u32 {sT[0]}, {sT[0]}, {WS_HFR}")
    I(f"s_and_b32 {sT[2]}, {sW}, 3"); I(f"s_lshr_b32 {sT[3]}, {sW}, 2")
    I(f"s_lshl_b32 {sT[5]}, {sT[2]}, 13"); I(f"s_lshl_b32 {sT[1]}, {sT[3]}, 12"); I(f"s_add_u32 {sT[1]}, {sT[1]}, {sT[5]}")
    def hdma(st):
        I(f"s_add_u32 m0, {sT[1]}, {(st&3)*32*K}"); I(f"s_add_u32 {sT[4]}, {sT[0]}, {st*4096}")
        for i in range(4): I(f"buffer_load_dwordx4 v2, {srd(SWS)}, {sT[4]} offen offset:{i*K} sc1 lds", f"H{st}")
    for st in range(4): hdma(st)
    I(f"v_add_u32 v24, {sT[5]}, v2"); I(f"v_add_u32 v12, {64*K}, v24")
    I(f"s_lshl_b32 {sT[5]}, {sT[2]}, 14")
    red_addr_write(g, 16, sT[5])
    I(f"s_lshl_b32 {sT[5]}, {sT[3]}, 7"); I(f"v_xor_b32 v16, {sT[5]}, v16")
    for st in range(7):
        a.vmwait(f"H{st}"); I("s_barrier")
        hb = 64 + 32 * (st & 1)
        ad, off = ("v24", (st & 3) * 32 * K) if (st & 3) < 2 else ("v12", ((st & 3) - 2) * 32 * K)
        for i in range(4):
            for t in range(2): I(f"ds_read_b128 {vr(hb+8*i+4*t,4)}, {ad} offset:{off + t*4096 + i*K}")
        if st >= 1 and st + 3 < 7: hdma(st + 3)
        for i in range(4):
            I(f"s_waitcnt lgkmcnt({2*(3-i)})")
            s = 4 * st + i
            for t in range(2):
                acc = vr(32 + 16 * t, 16)
                I(f"{MF} {acc}, {vr(128+4*s,4)}, {vr(hb+8*i+4*t,4)}, {acc if s else 0}")
    g.stamp(15, 28)
    for jj in range(4):
        if jj: I(f"v_xor_b32 v17, {jj*32}, v16")
        for t in range(2): I(f"ds_write_b128 {'v17' if jj else 'v16'}, {vr(32+16*t+4*jj,4)} offset:{t*8*K}")
    I("v_and_b32 v22, 7, v1"); I("v_lshlrev_b32 v24, 5, v22"); I(f"v_add_u32 v24, {L_PERS}, v24")
    GB, BB = 96, 104
    for v, off in ((GB, 768), (BB, 1024)):
        I(f"ds_read_b128 {vr(v,4)}, v24 offset:{off}"); I(f"ds_read_b128 {vr(v+4,4)}, v24 offset:{off+16}")
    I("s_waitcnt lgkmcnt(0)"); I("s_barrier")
    red_sum(g, 64)
    for i in range(0, 8, 2): I(f"v_pk_fma_f32 {vr(4+i,2)}, {vr(GB+i,2)}, {vr(BB+i,2)}, {vr(4+i,2)}")
    I("s_waitcnt lgkmcnt(0)")
    red_add(g, 64)
    for i in range(0, 8, 2): I(f"v_pk_fma_f32 {vr(4+i,2)}, {vr(GB+i,2)}, {vr(64+i,2)}, {vr(4+i,2)}")
    for i in range(4): I(f"v_cvt_pk_bf16_f32 v{32+i}, v{4+i}, v{8+i}")
    I(f"buffer_store_dwordx4 v[32:35], v25, {srd(SOUT)}, {sRLD} offen")
    g.stamp(16, 28)

def later_phases(g):
    attention(g)
    if g.stop == 3: return
    phase4(g)
    if g.stop == 4: return
    phase5(g)
    if g.stop == 5: return
    phase6(g)
```

```python
import sys, struct
from asmlib import Asm

NAME = "adaLN_cond__sliding_block__mixer_channel_mlp__prompt"
KN = NAME + "_kernel"

WS_EPOCH = 0
WS_REG   = 0x1000
WS_KVF   = 0x2000
WS_OF    = 0xA000
WS_YF    = 0xB000
WS_HF    = 0xC000
WS_MODG  = 0x10000
WS_STAT  = 0x20000
WS_WOF   = 0x100000
WS_W1F   = 0x200000
WS_W2F   = 0x400000
WS_KF    = 0x600000
WS_VF    = 0x800000
WS_OFR   = 0xA00000
WS_YFR   = 0xC00000
WS_HFR   = 0xE00000
WS_DBG   = 0x1500000
WS_END   = 0x1900000

K = 1024
L_EARLY = 128 * K
L_MISC  = 152 * K
L_GSA   = L_MISC
L_ST1   = L_MISC + 4 * K
L_PRD   = L_MISC + 6 * K
L_PERS  = L_MISC + 4 * K
L_KV    = 0
L_WO    = 80 * K
L_RED   = 0
LDS_BYTES = 160 * K

SX, SWQ, SWS, SRL, SWM, SC, SB1, SB2, SOUT = 4, 8, 12, 16, 20, 24, 28, 32, 36
def srd(b): return f"s[{b}:{b+3}]"
sW, sG, sM, sRB, sHQ, sTY, sTB, sKH, sR64, sCB, sTAG, sFAST = [f"s{i}" for i in range(40, 52)]
sT = [f"s{i}" for i in range(52, 64)]
sE1, sE4, sRLD, sRLJ, sEP, sSPIN = "s96", "s97", "s98", "s99", "s100", "s101"
KA = 64
SPIN_MAX = 1 << 17

def f32(x): return struct.unpack("<I", struct.pack("<f", x))[0]
def vr(b, n=1): return f"v{b}" if n == 1 else f"v[{b}:{b+n-1}]"
LOG2E = 1.4426950408889634

class Gen:
    def __init__(self, stop=None, force_slow=False, stamps=False):
        self.a = Asm(); self.stop = stop; self.force_slow = force_slow; self.stamps = stamps
        self.nstamp = 0
    def I(self, t, tag=None): self.a.I(t, tag)
    def C(self, t): self.a.C(t)

    def stamp(self, idx, r=62):
        if not self.stamps: return
        I = self.I
        l = self.a.newlabel("ST")
        I(f"s_cmp_lg_u32 {sW}, 0"); I(f"s_cbranch_scc1 {l}")
        I("s_memrealtime s[60:61]"); I("s_waitcnt lgkmcnt(0)")
        I("s_mov_b64 s[62:63], exec"); I("s_mov_b64 exec, 1")
        I(f"v_mov_b32 v{r}, s60"); I(f"v_mov_b32 v{r+1}, 0")
        I(f"s_lshl_b32 s59, s2, 7"); I(f"s_add_u32 s59, s59, {WS_DBG + 0x300000 + idx*4}")
        self.a.lines.append(f"buffer_store_dword v{r}, v{r+1}, {srd(SWS)}, s59 offen")
        I("s_mov_b64 exec, s[62:63]")
        self.a.label(l)

    def dma(self, voff, srdb, soff, ldsaddr_expr, tag, flags=""):
        s, c = ldsaddr_expr
        if s is None: self.I(f"s_mov_b32 m0, {c}")
        else: self.I(f"s_add_u32 m0, {s}, {c}")
        self.I(f"buffer_load_dwordx4 {voff}, {srd(srdb)}, {soff} offen {flags} lds".replace("  ", " "), tag)

    def mk_srd(self, b, ptr, nbytes):
        I = self.I
        I(f"s_mov_b32 s{b}, s{ptr}"); I(f"s_mov_b32 s{b+1}, s{ptr+1}")
        I(f"s_mov_b32 s{b+2}, {nbytes}"); I(f"s_mov_b32 s{b+3}, 0x20000")

    def prologue(self):
        I = self.I
        I("s_cmp_ge_u32 s2, 256"); I("s_cbranch_scc1 L_END")
        I(f"s_load_dwordx16 s[{KA}:{KA+15}], s[0:1], 0")
        I(f"s_load_dwordx8 s[{KA+16}:{KA+23}], s[0:1], 64")
        I(f"s_load_dwordx2 s[{KA+24}:{KA+25}], s[0:1], 96")
        I("v_and_b32 v1, 63, v0"); I("v_lshrrev_b32 v3, 6, v0"); I("v_lshlrev_b32 v2, 4, v1")
        I(f"v_readfirstlane_b32 {sW}, v3")
        I(f"s_and_b32 {sG}, s2, 7"); I(f"s_lshr_b32 {sM}, s2, 3")
        I(f"s_and_b32 {sT[0]}, {sM}, 1"); I(f"s_lshl_b32 {sRB}, {sG}, 1"); I(f"s_add_u32 {sRB}, {sRB}, {sT[0]}")
        I(f"s_lshr_b32 {sHQ}, {sM}, 1"); I(f"s_and_b32 {sHQ}, {sHQ}, 7"); I(f"s_lshr_b32 {sTY}, {sM}, 4")
        I(f"s_lshr_b32 {sTB}, {sW}, 1"); I(f"s_and_b32 {sKH}, {sW}, 1")
        I(f"s_and_b32 {sT[0]}, {sM}, 3"); I(f"s_lshl_b32 {sR64}, {sG}, 2"); I(f"s_add_u32 {sR64}, {sR64}, {sT[0]}")
        I(f"s_lshr_b32 {sCB}, {sM}, 2")
        I("v_lshrrev_b32 v6, 3, v1")
        I("v_and_b32 v7, 7, v1")
        I("v_lshrrev_b32 v8, 4, v1")
        I("v_xor_b32 v9, v7, v8"); I("v_lshlrev_b32 v9, 4, v9")
        I("v_lshl_add_u32 v4, v6, 10, v9"); I("v_xor_b32 v5, 64, v4")
        I("v_and_b32 v9, 1, v8"); I("v_lshlrev_b32 v9, 2, v9"); I("v_xor_b32 v9, v9, v7"); I("v_lshlrev_b32 v9, 4, v9")
        I("v_mul_u32_u24 v10, 3072, v6"); I("v_add_u32 v10, v10, v9")
        I("v_lshrrev_b32 v9, 2, v1"); I("v_mul_u32_u24 v11, 3072, v9"); I("v_and_b32 v9, 3, v1"); I("v_lshl_add_u32 v11, v9, 4, v11")
        I("s_waitcnt lgkmcnt(0)")
        p = lambda i: KA + 2 * i
        I(f"s_load_dword {sEP}, s[{p(12)}:{p(12)+1}], {WS_EPOCH}")
        self.mk_srd(SWM, p(9), 512 * 3072 * 2); self.mk_srd(SC, p(8), 1024)
        self.mk_srd(SX, p(0), 2048 * 512 * 2); self.mk_srd(SWQ, p(1), 512 * 1536 * 2)

    def issue_producer_loads(self):
        I = self.I
        I("s_cmp_ge_u32 s2, 96"); I("s_cbranch_scc1 L_NOPROD1")
        I("v_lshrrev_b32 v12, 2, v0"); I("v_lshlrev_b32 v13, 1, v12")
        I("v_mul_u32_u24 v12, 6144, v12"); I("v_and_b32 v9, 3, v0"); I("v_lshl_add_u32 v12, v9, 4, v12")
        I(f"s_lshl_b32 {sT[0]}, s2, 6")
        for i in range(4):
            I(f"buffer_load_ushort v{80+i}, v13, {srd(SC)}, 0 offen offset:{i*256}", "P")
        for i in range(4):
            I(f"buffer_load_dwordx4 v[{64+4*i}:{67+4*i}], v12, {srd(SWM)}, {sT[0]} offen", "P")
            if i < 3: I(f"s_add_u32 {sT[0]}, {sT[0]}, {128*6144}")
        self.a.label("L_NOPROD1")

    def issue_x_w(self):
        I = self.I
        I(f"s_lshl_b32 {sT[1]}, {sRB}, 17"); I(f"s_lshl_b32 {sT[0]}, {sTB}, 15"); I(f"s_add_u32 {sT[1]}, {sT[1]}, {sT[0]}")
        I(f"s_lshl_b32 {sT[0]}, {sKH}, 9"); I(f"s_add_u32 {sT[1]}, {sT[1]}, {sT[0]}")
        I(f"s_lshl_b32 {sT[2]}, {sW}, 14")
        for q in range(4):
            for t in range(4):
                I(f"s_add_u32 {sT[0]}, {sT[1]}, {q*128 + t*8192}")
                self.dma("v4" if t % 2 == 0 else "v5", SX, sT[0], (sT[2], q * 4096 + t * 1024), f"X{q}")
        I(f"s_lshr_b32 {sT[0]}, {sW}, 2"); I(f"s_lshl_b32 {sT[0]}, {sT[0]}, 8")
        I(f"s_and_b32 {sT[3]}, {sW}, 3"); I(f"s_lshl_b32 {sT[4]}, {sT[3]}, 4"); I(f"s_lshl_b32 {sT[3]}, {sT[3]}, 3")
        I(f"s_add_u32 {sT[3]}, {sT[3]}, {sT[0]}"); I(f"s_add_u32 {sT[4]}, {sT[4]}, {sT[0]}")
        I(f"s_mul_i32 {sT[3]}, {sT[3]}, 3072"); I(f"s_mul_i32 {sT[4]}, {sT[4]}, 3072")
        I(f"s_lshl_b32 {sT[0]}, {sHQ}, 7"); I(f"s_add_u32 {sT[3]}, {sT[3]}, {sT[0]}"); I(f"s_add_u32 {sT[4]}, {sT[4]}, {sT[0]}")
        I(f"s_lshl_b32 {sT[0]}, {sTY}, 10"); I(f"s_add_u32 {sT[3]}, {sT[3]}, {sT[0]}"); I(f"s_add_u32 {sT[3]}, {sT[3]}, 1024")
        I(f"s_lshl_b32 {sT[0]}, {sTY}, 6"); I(f"s_add_u32 {sT[4]}, {sT[4]}, {sT[0]}")
        I(f"s_mul_i32 {sT[5]}, {sW}, 3072")
        for i in range(3):
            I(f"s_add_u32 {sT[0]}, {sT[3]}, {i*32*3072}")
            self.dma("v10", SWQ, sT[0], (sT[5], L_EARLY + i * 1024), "WKV")

    def late_w(self, slot):
        I = self.I
        if slot < 5:
            I(f"s_add_u32 {sT[0]}, {sT[3]}, {(slot+3)*32*3072}")
            self.dma("v10", SWQ, sT[0], (sT[2], slot * 1024), "WKV")
        else:
            I(f"s_add_u32 {sT[0]}, {sT[4]}, {(slot-5)*64*3072}")
            self.dma("v11", SWQ, sT[0], (sT[2], slot * 1024), "WQ")

    def rest_setup(self):
        I = self.I
        p = lambda i: KA + 2 * i
        self.mk_srd(SWS, p(12), WS_END)
        self.mk_srd(SB1, p(5), 1792 * 2); self.mk_srd(SB2, p(7), 1024); self.mk_srd(SOUT, p(10), 2048 * 512 * 2)
        T, a, b, c2 = sT[6], sT[7], sT[8], sT[9]
        I(f"s_lshl_b32 {T}, s2, 3"); I(f"s_add_u32 {T}, {T}, {sW}")
        I(f"s_mov_b32 s{SRL+3}, 0x20000")
        I(f"s_cmp_lt_u32 {T}, 896"); I("s_cbranch_scc1 L_RL_W1")
        I(f"s_cmp_lt_u32 {T}, 1792"); I("s_cbranch_scc1 L_RL_W2")
        I(f"s_mov_b32 s{SRL}, s{p(2)}"); I(f"s_mov_b32 s{SRL+1}, s{p(2)+1}"); I(f"s_mov_b32 s{SRL+2}, {512*512*2}")
        I(f"s_sub_u32 {T}, {T}, 1792"); I(f"s_and_b32 {a}, {T}, 7"); I(f"s_lshr_b32 {b}, {T}, 3")
        I(f"s_lshl_b32 {sT[10]}, {b}, 14"); I(f"s_lshl_b32 {c2}, {a}, 7"); I(f"s_add_u32 {sT[10]}, {sT[10]}, {c2}")
        I(f"s_lshl_b32 {sRLD}, {a}, 16"); I(f"s_lshl_b32 {c2}, {b}, 11"); I(f"s_add_u32 {sRLD}, {sRLD}, {c2}"); I(f"s_add_u32 {sRLD}, {sRLD}, {WS_WOF}")
        I(f"s_mov_b32 {sE1}, 1024"); I(f"s_mov_b32 {sE4}, 8192"); I(f"s_mov_b32 {sT[11]}, 4096"); I(f"s_mov_b32 {sRLJ}, 1024")
        I("s_branch L_RL_DONE")
        self.a.label("L_RL_W2")
        I(f"s_mov_b32 s{SRL}, s{p(6)}"); I(f"s_mov_b32 s{SRL+1}, s{p(6)+1}"); I(f"s_mov_b32 s{SRL+2}, {1792*512*2}")
        I(f"s_sub_u32 {T}, {T}, 896"); I(f"s_and_b32 {a}, {T}, 7"); I(f"s_lshr_b32 {b}, {T}, 3")
        I(f"s_lshr_b32 {sT[10]}, {b}, 2"); I(f"s_lshl_b32 {sT[10]}, {sT[10]}, 6")
        I(f"s_and_b32 {c2}, {b}, 1"); I(f"s_lshl_b32 {c2}, {c2}, 5"); I(f"s_add_u32 {sT[10]}, {sT[10]}, {c2}")
        I(f"s_lshr_b32 {c2}, {b}, 1"); I(f"s_and_b32 {c2}, {c2}, 1"); I(f"s_add_u32 {sT[10]}, {sT[10]}, {c2}")
        I(f"s_lshl_b32 {sT[10]}, {sT[10]}, 10"); I(f"s_lshl_b32 {c2}, {a}, 7"); I(f"s_add_u32 {sT[10]}, {sT[10]}, {c2}")
        I(f"s_mul_i32 {sRLD}, {a}, {224*1024}"); I(f"s_lshl_b32 {c2}, {b}, 10"); I(f"s_add_u32 {sRLD}, {sRLD}, {c2}"); I(f"s_add_u32 {sRLD}, {sRLD}, {WS_W2F}")
        I(f"s_mov_b32 {sE1}, 2048"); I(f"s_mov_b32 {sE4}, 16384"); I(f"s_mov_b32 {sT[11]}, 8192"); I(f"s_mov_b32 {sRLJ}, {112*1024}")
        I("s_branch L_RL_DONE")
        self.a.label("L_RL_W1")
        I(f"s_mov_b32 s{SRL}, s{p(4)}"); I(f"s_mov_b32 s{SRL+1}, s{p(4)+1}"); I(f"s_mov_b32 s{SRL+2}, {512*1792*2}")
        I(f"s_and_b32 {b}, {T}, 31"); I(f"s_lshr_b32 {a}, {T}, 5")
        I(f"s_mul_i32 {sT[10]}, {b}, {16*3584}"); I(f"s_lshl_b32 {c2}, {a}, 7"); I(f"s_add_u32 {sT[10]}, {sT[10]}, {c2}")
        I(f"s_lshl_b32 {sRLD}, {a}, 16"); I(f"s_lshl_b32 {c2}, {b}, 10"); I(f"s_add_u32 {sRLD}, {sRLD}, {c2}"); I(f"s_add_u32 {sRLD}, {sRLD}, {WS_W1F}")
        I(f"s_mov_b32 {sE1}, 3584"); I(f"s_mov_b32 {sE4}, {4*3584}"); I(f"s_mov_b32 {sT[11]}, {8*3584}"); I(f"s_mov_b32 {sRLJ}, {32*1024}")
        self.a.label("L_RL_DONE")
        I("v_lshrrev_b32 v9, 5, v1"); I(f"v_mul_lo_u32 v23, {sT[11]}, v9"); I("v_and_b32 v9, 31, v1"); I("v_lshl_add_u32 v23, v9, 2, v23")
        I(f"v_add_u32 v23, {sT[10]}, v23")
        I("s_waitcnt lgkmcnt(0)")
        I(f"s_mul_i32 {sTAG}, {sEP}, 0x9E3779B1"); I(f"s_add_u32 {sTAG}, {sTAG}, 0x7F4A7C15"); I(f"s_and_b32 {sTAG}, {sTAG}, 0xfffffff0")

    def issue_relayout_loads(self):
        I = self.I
        a = sT[6]
        I(f"s_mov_b32 {a}, 0")
        for e in range(8):
            I(f"buffer_load_dword v{24+e}, v23, {srd(SRL)}, {a} offen", "RL")
            if e == 3: I(f"s_mov_b32 {a}, {sE4}")
            elif e < 7: I(f"s_add_u32 {a}, {a}, {sE1}")

    def producer(self):
        I = self.I
        I("s_cmp_ge_u32 s2, 96"); I("s_cbranch_scc1 L_NOPROD2")
        saved = list(self.a.vm)
        self.a.vmwait("P")
        for i in range(4): I(f"v_lshlrev_b32 v{80+i}, 16, v{80+i}")
        for i in range(4): I(f"v_mul_f32 v{84+i}, {f32(-LOG2E):#x}, v{80+i}")
        for i in range(4): I(f"v_exp_f32 v{84+i}, v{84+i}")
        for i in range(4): I(f"v_add_f32 v{84+i}, 1.0, v{84+i}")
        for i in range(4): I(f"v_rcp_f32 v{84+i}, v{84+i}")
        for i in range(4): I(f"v_mul_f32 v{80+i}, v{80+i}, v{84+i}")
        for i in range(4): I(f"v_cvt_pk_bf16_f32 v{80+i}, v{80+i}, v{80+i}")
        for i in range(4): I(f"v_and_b32 v{80+i}, 0xffff0000, v{80+i}")
        for i in range(4):
            for d in range(4):
                I(f"v_lshlrev_b32 v96, 16, v{64+4*i+d}"); I(f"v_and_b32 v97, 0xffff0000, v{64+4*i+d}")
                if i == 0:
                    I(f"v_mul_f32 v{88+2*d}, v96, v80"); I(f"v_mul_f32 v{89+2*d}, v97, v80")
                else:
                    I(f"v_fmac_f32 v{88+2*d}, v96, v{80+i}"); I(f"v_fmac_f32 v{89+2*d}, v97, v{80+i}")
        for i in range(4): I(f"v_permlane32_swap_b32 v{88+i}, v{92+i}")
        for i in range(4): I(f"v_add_f32 v{88+i}, v{88+i}, v{92+i}")
        for i in range(2): I(f"v_permlane16_swap_b32 v{88+i}, v{90+i}")
        for i in range(2): I(f"v_add_f32 v{88+i}, v{88+i}, v{90+i}")
        for ror in (8, 4):
            for i in range(2): I(f"v_add_f32_dpp v{88+i}, v{88+i}, v{88+i} row_ror:{ror} row_mask:0xf bank_mask:0xf")
        I("v_and_b32 v96, 3, v1"); I("v_lshlrev_b32 v96, 5, v96"); I("v_lshl_add_u32 v96, v8, 3, v96")
        I(f"s_lshl_b32 {sT[0]}, {sW}, 7"); I(f"s_add_u32 {sT[0]}, {sT[0]}, {L_PRD}"); I(f"v_add_u32 v96, {sT[0]}, v96")
        I("ds_write_b64 v96, v[88:89]")
        I("s_waitcnt lgkmcnt(0)"); I("s_barrier")
        I(f"s_cmp_lg_u32 {sW}, 0"); I("s_cbranch_scc1 L_NOPROD2")
        I("v_and_b32 v96, 15, v1"); I("v_lshlrev_b32 v96, 3, v96"); I(f"v_add_u32 v97, {L_PRD}, v96")
        for w in range(8): I(f"ds_read_b64 v[{64+2*w}:{65+2*w}], v97 offset:{w*128}")
        I("s_waitcnt lgkmcnt(0)")
        for st in (8, 4, 2):
            for j in range(0, st, 2): I(f"v_pk_add_f32 v[{64+j}:{65+j}], v[{64+j}:{65+j}], v[{64+j+st}:{65+j+st}]")
        I("v_cvt_pk_bf16_f32 v64, v64, v65"); I(f"v_mov_b32 v65, {sTAG}")
        I(f"s_lshl_b32 {sT[0]}, s2, 7"); I(f"s_add_u32 {sT[0]}, {sT[0]}, {WS_MODG}")
        I("s_mov_b64 exec, 0xffff")
        self.a.lines.append(f"buffer_store_dwordx2 v[64:65], v96, {srd(SWS)}, {sT[0]} offen sc1")
        I("s_mov_b64 exec, -1")
        self.a.label("L_NOPROD2")
        self.a.vm = [t for t in saved if t != "P"]

    XN = 128
    def ln1(self):
        I = self.I; XN = self.XN
        I("v_and_b32 v9, 31, v1"); I("v_lshrrev_b32 v20, 5, v1")
        I("v_lshrrev_b32 v21, 1, v9"); I("v_and_b32 v21, 7, v21"); I("v_xor_b32 v21, v21, v20"); I("v_lshlrev_b32 v21, 4, v21")
        I("v_lshl_add_u32 v12, v9, 7, v21"); I(f"v_add_u32 v12, {sT[2]}, v12")
        for u in range(1, 4): I(f"v_xor_b32 v{12+u}, {u*32}, v12")
        for r in range(16, 20): I(f"v_mov_b32 v{r}, 0")
        for r in range(32, 36): I(f"v_mov_b32 v{r}, 0")
        slots = {0: [0, 1, 2, 3], 1: [4, 5, 6, 7], 2: [8], 3: []}
        for q in range(4):
            self.a.vmwait(f"X{q}")
            for u in range(4): I(f"ds_read_b128 v[{112+4*u}:{115+4*u}], v{12+u} offset:{q*4096}")
            I("s_waitcnt lgkmcnt(0)")
            for sl in slots[q]: self.late_w(sl)
            if q == 2:
                self.issue_relayout_loads()
            if q == 3:
                I("v_lshlrev_b32 v22, 3, v0")
                I(f"s_mov_b32 {sT[6]}, {WS_MODG}")
                I(f"buffer_load_dwordx2 v[36:37], v22, {srd(SWS)}, {sT[6]} offen sc1", "MOD")
            for d in range(16):
                b = XN + 32 * q + 2 * d
                I(f"v_lshlrev_b32 v{b}, 16, v{112+d}"); I(f"v_and_b32 v{b+1}, 0xffff0000, v{112+d}")
                s0 = 16 if d % 2 == 0 else 32
                I(f"v_pk_add_f32 v[{s0}:{s0+1}], v[{s0}:{s0+1}], v[{b}:{b+1}]")
                I(f"v_pk_fma_f32 v[{s0+2}:{s0+3}], v[{b}:{b+1}], v[{b}:{b+1}], v[{s0+2}:{s0+3}]")
        I("v_pk_add_f32 v[16:17], v[16:17], v[32:33]"); I("v_pk_add_f32 v[18:19], v[18:19], v[34:35]")
        I("v_add_f32 v16, v16, v17"); I("v_add_f32 v18, v18, v19")
        I("v_permlane32_swap_b32 v16, v18"); I("v_add_f32 v16, v16, v18")
        I(f"s_lshl_b32 {sT[0]}, {sTB}, 9"); I(f"s_add_u32 {sT[0]}, {sT[0]}, {L_ST1}")
        I("v_lshlrev_b32 v17, 4, v9"); I(f"v_add_u32 v17, {sT[0]}, v17")
        I(f"s_lshl_b32 {sT[0]}, {sKH}, 3"); I("v_lshl_add_u32 v18, v20, 2, v17"); I(f"v_add_u32 v18, {sT[0]}, v18")
        I("ds_write_b32 v18, v16"); I("s_waitcnt lgkmcnt(0)"); I("s_barrier")
        I("ds_read_b128 v[32:35], v17"); I("s_waitcnt lgkmcnt(0)")
        I("v_add_f32 v32, v32, v34"); I("v_add_f32 v33, v33, v35")
        I(f"v_mul_f32 v32, {f32(1/512):#x}, v32"); I(f"v_mul_f32 v33, {f32(1/512):#x}, v33")
        I("v_fma_f32 v33, -v32, v32, v33"); I("v_max_f32 v33, 0, v33"); I(f"v_add_f32 v33, {f32(1e-5):#x}, v33")
        I("v_rsq_f32 v16, v33"); I("v_mul_f32 v17, v32, v16"); I("v_sub_f32 v17, 0, v17")
        for d in range(64):
            b = XN + 2 * d
            I(f"v_pk_fma_f32 v[{b}:{b+1}], v[{b}:{b+1}], v[16:17], v[16:17] op_sel:[0,0,1] op_sel_hi:[1,0,1]")

    def spin_guard(self, exit_label):
        I = self.I
        I(f"s_add_u32 {sSPIN}, {sSPIN}, 1"); I(f"s_cmp_gt_u32 {sSPIN}, {SPIN_MAX}"); I(f"s_cbranch_scc1 {exit_label}")

    def mod_fetch(self):
        I = self.I
        I(f"s_mov_b32 {sSPIN}, 0")
        self.a.vmwait("MOD")
        self.a.label("L_MODCHK")
        I(f"v_cmp_ne_u32 vcc, {sTAG}, v37"); I("s_cbranch_vccz L_MODOK")
        self.spin_guard("L_MODOK")
        self.a.lines.append(f"buffer_load_dwordx2 v[36:37], v22, {srd(SWS)}, {sT[6]} offen sc1")
        I("s_waitcnt vmcnt(0)"); I("s_branch L_MODCHK")
        self.a.label("L_MODOK")
        I(f"s_cmp_ge_u32 {sW}, 4"); I(f"s_cselect_b32 {sT[0]}, 1.0, 0"); I(f"s_cselect_b32 {sT[1]}, 0, 32")
        I("v_lshlrev_b32 v38, 16, v36"); I("v_and_b32 v39, 0xffff0000, v36")
        I(f"v_add_f32 v38, {sT[0]}, v38"); I(f"v_add_f32 v39, {sT[0]}, v39")
        I("v_cvt_pk_bf16_f32 v36, v38, v39")
        I("v_lshlrev_b32 v38, 16, v36"); I("v_and_b32 v39, 0xffff0000, v36")
        I("v_and_b32 v36, 255, v0"); I("v_lshrrev_b32 v37, 2, v36"); I("v_lshlrev_b32 v37, 6, v37"); I("v_and_b32 v36, 3, v36")
        I("v_lshl_add_u32 v36, v36, 3, v37"); I(f"s_add_u32 {sT[1]}, {sT[1]}, {L_GSA}"); I(f"v_add_u32 v36, {sT[1]}, v36")
        I("ds_write_b64 v36, v[38:39]")
        I("v_bfe_u32 v9, v1, 2, 2"); I("v_and_b32 v21, 3, v1"); I("v_and_b32 v22, 1, v8")
        I("v_lshlrev_b32 v12, 7, v9"); I("v_lshl_add_u32 v12, v21, 3, v12"); I("v_lshl_add_u32 v12, v22, 5, v12")
        I("v_lshrrev_b32 v13, 1, v9"); I(f"v_xor_b32 v13, {sKH}, v13"); I("v_lshl_add_u32 v12, v13, 6, v12")
        I(f"s_lshl_b32 {sT[0]}, {sKH}, 2"); I(f"v_add_u32 v13, {sT[0]}, v20")
        I("v_mul_u32_u24 v14, 3072, v13"); I("v_add_u32 v14, v14, v12"); I(f"v_add_u32 v14, {L_EARLY}, v14")
        I("v_lshl_add_u32 v12, v13, 14, v12")
        I("v_xor_b32 v13, 64, v12"); I("v_xor_b32 v15, 64, v14")
        I("v_lshl_add_u32 v10, v20, 3, v9"); I("v_lshlrev_b32 v10, 6, v10"); I("v_lshl_add_u32 v10, v21, 3, v10")
        I(f"v_xor_b32 v22, {sKH}, v22"); I("v_lshl_add_u32 v10, v22, 5, v10"); I(f"s_lshl_b32 {sT[0]}, {sKH}, 16"); I(f"v_add_u32 v10, {sT[0]}, v10")
        I(f"s_lshl_b32 {sT[0]}, {sKH}, 11"); I(f"s_add_u32 {sT[0]}, {sT[0]}, {L_GSA}"); I("v_lshlrev_b32 v11, 6, v20"); I(f"v_add_u32 v11, {sT[0]}, v11")
        I("s_waitcnt lgkmcnt(0)"); I("s_barrier")

    def kv_loop(self, is_v):
        I = self.I; XN = self.XN
        def reads(s):
            gb = 32 + 16 * (s & 1); wb = 112 + 8 * (s & 1)
            for i in range(4): I(f"ds_read_b128 v[{gb+4*i}:{gb+4*i+3}], v11 offset:{s*128 + i*16}")
            i2 = s >> 1
            if i2 < 3: ak, asd, off = "v14", "v15", (s & 1) * 6 * K + i2 * K
            else: ak, asd, off = "v12", "v13", (s & 1) * 32 * K + (i2 - 3) * K
            for rd in range(2): I(f"ds_read_b64_tr_b16 v[{wb+2*rd}:{wb+2*rd+1}], {ak} offset:{off + rd*512}")
            for rd in range(2): I(f"ds_read_b64_tr_b16 v[{wb+4+2*rd}:{wb+4+2*rd+1}], {asd} offset:{off + rd*512}")
        reads(0)
        for s in range(16):
            gb = 32 + 16 * (s & 1); wb = 112 + 8 * (s & 1); b = XN + 8 * s
            I("s_waitcnt lgkmcnt(4)")
            if s + 1 < 16: reads(s + 1)
            for d in range(4):
                I(f"v_pk_fma_f32 v[{b+2*d}:{b+2*d+1}], v[{b+2*d}:{b+2*d+1}], v[{gb+2*d}:{gb+2*d+1}], v[{gb+8+2*d}:{gb+8+2*d+1}]")
            for d in range(4): I(f"v_cvt_pk_bf16_f32 v{b+d}, v{b+2*d}, v{b+2*d+1}")
            I(f"s_waitcnt lgkmcnt({8 if s + 1 < 16 else 0})")
            for f in range(2):
                acc = vr(64 + 16 * f, 16); wf = vr(wb + 4 * f, 4); hf = vr(b, 4)
                A, B = (hf, wf) if is_v else (wf, hf)
                I(f"v_mfma_f32_32x32x16_bf16 {acc}, {A}, {B}, {acc if s else 0}")

    def kv_finish(self):
        I = self.I
        I(f"s_add_u32 {sT[0]}, {sT[2]}, {12*K}"); I(f"v_add_u32 v11, {sT[0]}, v2"); I(f"v_xor_b32 v9, {16*K}, v11")
        for i in range(4): I(f"ds_write_b128 v11, v[{80+4*i}:{83+4*i}] offset:{i*1024}")
        I("s_waitcnt lgkmcnt(0)"); I("s_barrier")
        for i in range(4): I(f"ds_read_b128 v[{80+4*i}:{83+4*i}], v9 offset:{i*1024}")
        I(f"s_lshl_b32 {sT[0]}, {sHQ}, 2"); I(f"s_lshl_b32 {sT[1]}, {sKH}, 1"); I(f"s_add_u32 {sT[0]}, {sT[0]}, {sT[1]}"); I(f"s_lshl_b32 {sT[0]}, {sT[0]}, 16")
        I(f"s_lshl_b32 {sT[1]}, {sRB}, 2"); I(f"s_add_u32 {sT[1]}, {sT[1]}, {sTB}"); I(f"s_lshl_b32 {sT[1]}, {sT[1]}, 10"); I(f"s_add_u32 {sT[0]}, {sT[0]}, {sT[1]}")
        I(f"s_lshl_b32 {sT[1]}, {sTY}, 21"); I(f"s_add_u32 {sT[0]}, {sT[0]}, {sT[1]}"); I(f"s_add_u32 {sT[0]}, {sT[0]}, {WS_KF}")
        I(f"s_mov_b32 {sT[1]}, 512"); I(f"s_cmp_eq_u32 {sTY}, 0")
        I(f"s_cselect_b32 {sT[1]}, 65536, {sT[1]}"); I(f"s_add_u32 {sT[1]}, {sT[0]}, {sT[1]}")
        I("v_and_b32 v21, 1, v8"); I("v_lshlrev_b32 v21, 16, v21"); I("v_lshl_add_u32 v21, v20, 8, v21"); I("v_and_b32 v22, 15, v1"); I("v_lshl_add_u32 v21, v22, 4, v21")
        I(f"s_cmp_eq_u32 {sTY}, 0"); I("s_cselect_b64 s[90:91], -1, 0"); I("v_cndmask_b32 v21, v21, v2, s[90:91]")
        I("s_waitcnt lgkmcnt(0)")
        for i in range(8): I(f"v_pk_add_f32 v[{64+2*i}:{65+2*i}], v[{64+2*i}:{65+2*i}], v[{80+2*i}:{81+2*i}]")
        for i in range(8): I(f"v_cvt_pk_bf16_f32 v{64+i}, v{64+2*i}, v{65+2*i}")
        I(f"buffer_store_dwordx4 v[64:67], v21, {srd(SWS)}, {sT[0]} offen sc1", "ST")
        I(f"buffer_store_dwordx4 v[68:71], v21, {srd(SWS)}, {sT[1]} offen sc1", "ST")
        I(f"s_mov_b32 {sT[0]}, 0x05040100"); I(f"s_mov_b32 {sT[1]}, 0x07060302")
        for i in range(4): I(f"v_perm_b32 v{32+i}, v{25+2*i}, v{24+2*i}, {sT[0]}")
        for i in range(4): I(f"v_perm_b32 v{36+i}, v{25+2*i}, v{24+2*i}, {sT[1]}")
        I(f"s_add_u32 {sT[0]}, {sRLD}, {sRLJ}")
        I(f"buffer_store_dwordx4 v[32:35], v2, {srd(SWS)}, {sRLD} offen sc1", "ST")
        I(f"buffer_store_dwordx4 v[36:39], v2, {srd(SWS)}, {sT[0]} offen sc1", "ST")

    def q_loop(self):
        I = self.I; XN = self.XN
        def reads(s):
            wb = 112 + 4 * (s & 3)
            off = (s & 3) * 16 * K + (5 + (s >> 2)) * K
            for rd in range(2): I(f"ds_read_b64_tr_b16 v[{wb+2*rd}:{wb+2*rd+1}], v10 offset:{off + rd*256}")
        for s in range(3): reads(s)
        for s in range(16):
            if s + 3 < 16: reads(s + 3)
            rem = min(3, 15 - s)
            I(f"s_waitcnt lgkmcnt({2*rem})")
            I(f"v_mfma_f32_32x32x16_bf16 v[96:111], {vr(112+4*(s&3),4)}, {vr(XN+8*s,4)}, {'v[96:111]' if s else 0}")
        I(f"s_lshl_b32 {sT[0]}, {sW}, 11"); I(f"s_add_u32 {sT[0]}, {sT[0]}, {L_EARLY}"); I(f"v_add_u32 v11, {sT[0]}, v2"); I(f"v_xor_b32 v9, {2*K}, v11")
        for i in range(2): I(f"ds_write_b128 v11, v[{104+4*i}:{107+4*i}] offset:{i*1024}")
        self.a.vmwait0("lgkmcnt(0)"); I("s_barrier")
        I(f"s_cmp_lg_u32 {sW}, 0"); I("s_cbranch_scc1 L_NOFLAG1")
        I(f"s_getreg_b32 {sT[0]}, hwreg(HW_REG_XCC_ID)"); I(f"s_and_b32 {sT[0]}, {sT[0]}, 15"); I(f"s_or_b32 {sT[0]}, {sT[0]}, {sTAG}")
        I(f"v_mov_b32 v21, {sTAG}"); I(f"v_mov_b32 v22, {sT[0]}"); I("v_mov_b32 v23, 0")
        I(f"s_lshl_b32 {sT[0]}, {sHQ}, 4"); I(f"s_add_u32 {sT[0]}, {sT[0]}, {sRB}"); I(f"s_lshl_b32 {sT[0]}, {sT[0]}, 1"); I(f"s_add_u32 {sT[0]}, {sT[0]}, {sTY}")
        I(f"s_lshl_b32 {sT[0]}, {sT[0]}, 7"); I(f"s_add_u32 {sT[0]}, {sT[0]}, {WS_KVF}")
        I(f"s_lshl_b32 {sT[1]}, {sG}, 5"); I(f"s_add_u32 {sT[1]}, {sT[1]}, {sM}"); I(f"s_lshl_b32 {sT[1]}, {sT[1]}, 2"); I(f"s_add_u32 {sT[1]}, {sT[1]}, {WS_REG}")
        I("s_mov_b64 exec, 1")
        self.a.lines.append(f"buffer_store_dword v21, v23, {srd(SWS)}, {sT[0]} offen sc1")
        self.a.lines.append(f"buffer_store_dword v22, v23, {srd(SWS)}, {sT[1]} offen sc1")
        I("s_mov_b64 exec, -1")
        self.a.label("L_NOFLAG1")
        for i in range(2): I(f"ds_read_b128 v[{104+4*i}:{107+4*i}], v9 offset:{i*1024}")
        I(f"v_mov_b32 v16, {f32(0.25*LOG2E):#x}")
        I("s_waitcnt lgkmcnt(0)")
        for i in range(4): I(f"v_pk_add_f32 v[{96+2*i}:{97+2*i}], v[{96+2*i}:{97+2*i}], v[{104+2*i}:{105+2*i}]")
        for i in range(8): I(f"v_mul_f32 v{96+i}, v16, v{96+i}")
        for i in range(4): I(f"v_cvt_pk_bf16_f32 v{4+i}, v{96+2*i}, v{97+2*i}")

    def dump_q(self):
        I = self.I
        I(f"s_lshl_b32 {sT[0]}, {sHQ}, 2"); I(f"s_lshl_b32 {sT[1]}, {sTY}, 1"); I(f"s_add_u32 {sT[0]}, {sT[0]}, {sT[1]}"); I(f"s_add_u32 {sT[0]}, {sT[0]}, {sKH}"); I(f"s_lshl_b32 {sT[0]}, {sT[0]}, 16")
        I(f"s_lshl_b32 {sT[1]}, {sRB}, 2"); I(f"s_add_u32 {sT[1]}, {sT[1]}, {sTB}"); I(f"s_lshl_b32 {sT[1]}, {sT[1]}, 10"); I(f"s_add_u32 {sT[0]}, {sT[0]}, {sT[1]}")
        I(f"s_add_u32 {sT[0]}, {sT[0]}, {WS_DBG}")
        I(f"buffer_store_dwordx4 v[4:7], v2, {srd(SWS)}, {sT[0]} offen")

    def phase2(self):
        self.prologue()
        self.issue_producer_loads()
        self.issue_x_w()
        self.rest_setup()
        self.stamp(0)
        self.producer()
        self.ln1()
        self.stamp(1)
        self.mod_fetch()
        self.stamp(2)
        I = self.I
        I(f"s_cmp_lg_u32 {sTY}, 0"); I("s_cbranch_scc1 L_KVV")
        self.kv_loop(False); I("s_branch L_KVDONE")
        self.a.label("L_KVV"); self.kv_loop(True)
        self.a.label("L_KVDONE")
        self.stamp(3)
        self.kv_finish()
        self.q_loop()
        self.stamp(4)

    def build(self):
        self.phase2()
        if self.stop == 2:
            self.dump_q()
        else:
            from gen2 import later_phases
            later_phases(self)
        self.a.label("L_END")
        body = self.a.finalize()
        hdr = [f"; @launch grid=(256,1,1) block=(512,1,1) lds={LDS_BYTES}",
               '.amdgcn_target "amdgcn-amd-amdhsa--gfx950"', ".text", f".globl {KN}", ".p2align 8", f".type {KN},@function", f"{KN}:"]
        tail = ["s_endpgm", '.section .rodata,"a"', ".p2align 6", f".amdhsa_kernel {KN}",
                "  .amdhsa_next_free_vgpr 256", "  .amdhsa_next_free_sgpr 102", "  .amdhsa_accum_offset 256",
                "  .amdhsa_group_segment_fixed_size 0", "  .amdhsa_kernarg_size 104", "  .amdhsa_user_sgpr_count 2",
                "  .amdhsa_user_sgpr_kernarg_segment_ptr 1", "  .amdhsa_system_sgpr_workgroup_id_x 1", ".end_amdhsa_kernel"]
        return "\n".join(hdr + ["    " + l if not l.endswith(":") else l for l in body] + tail) + "\n"

if __name__ == "__main__":
    import argparse
    ap = argparse.ArgumentParser()
    ap.add_argument("--stop", type=int, default=None); ap.add_argument("--slow", action="store_true"); ap.add_argument("--stamps", action="store_true")
    ap.add_argument("-o", default="k.s")
    a = ap.parse_args()
    g = Gen(stop=a.stop, force_slow=a.slow, stamps=a.stamps)
    s = g.build()
    open(a.o, "w").write(s)
    print("lines", s.count("\n"), "nops", g.a.nnops)
```
